```python
import torch

def _softmax(x, axis=-1):
    return torch.softmax(x, dim=axis)

def _gelu(x):
    return torch.nn.functional.gelu(x, approximate='tanh')

def _silu(x):
    return torch.nn.functional.silu(x)

def _sigmoid(x):
    return torch.sigmoid(x)

def _layernorm(x, axis=-1, eps=1e-05):
    m = x.mean(dim=axis, keepdim=True)
    v = x.var(dim=axis, keepdim=True, unbiased=False)
    return (x - m) / torch.sqrt(v + eps)

def _scatter_add(tgt, idx, src, axis=0):
    return tgt.clone().index_add_(axis, idx, src)

def _segment_sum(src, seg, n):
    out = torch.zeros((n,) + src.shape[1:], dtype=src.dtype)
    return out.index_add_(0, seg, src)

def _pad(x, pw):
    flat = tuple((v for pair in reversed(pw) for v in pair))
    return torch.nn.functional.pad(x, flat)
kernel_name = 'sequential_preLN__memory_aug_recurrent_mem_tr__mixer_token_mlp__prompt'

def setup_inputs():

    _w = lambda a: (lambda t: t.to(torch.bfloat16) if t.is_floating_point() else t)(torch.as_tensor(a))

    def _A_setup():
        B, S, Dm = (1, 2048, 512)
        H, Dh = (32, 128)
        M, seg = (8, 32)
        seg = min(seg, S)
        S = S // seg * seg
        return {'x': _w((lambda *s: torch.randn(*s, dtype=torch.bfloat16) * 0.05)(B, S, Dm)), 'mem0': _w((lambda *s: torch.randn(*s, dtype=torch.bfloat16) * 0.2)(B, M, Dm)), 'Wq': _w((lambda *s: torch.randn(*s, dtype=torch.bfloat16) * 1.6)(Dm, H, Dh) * Dm ** (-0.5)), 'Wk': _w((lambda *s: torch.randn(*s, dtype=torch.bfloat16) * 1.6)(Dm, H, Dh) * Dm ** (-0.5)), 'Wv': _w((lambda *s: torch.randn(*s, dtype=torch.bfloat16) * 0.2)(Dm, H, Dh) * Dm ** (-0.5)), 'Wo': _w((lambda *s: torch.randn(*s, dtype=torch.bfloat16) * 0.2)(H, Dh, Dm) * (H * Dh) ** (-0.5)), 'seg_len': seg}
    _A_in = _A_setup()

    def _B_setup():
        B, S, D, F = (1, 2048, 512, 1792)
        return {'x': _w((lambda *s: torch.randn(*s, dtype=torch.bfloat16) * 0.05)(B, S, D)), 'w1': _w((lambda *s: torch.randn(*s, dtype=torch.bfloat16) * 0.4)(S, F) * S ** (-0.5)), 'b1': _w((lambda *s: torch.randn(*s, dtype=torch.bfloat16) * 3.2)(F) * 0.02), 'w2': _w((lambda *s: torch.randn(*s, dtype=torch.bfloat16) * 0.2)(F, S) * F ** (-0.5)), 'b2': _w((lambda *s: torch.randn(*s, dtype=torch.bfloat16) * 0.4)(S) * 0.02)}
    _B_in = _B_setup()
    return {'A_x': _A_in['x'], 'A_mem0': _A_in['mem0'], 'A_Wq': _A_in['Wq'], 'A_Wk': _A_in['Wk'], 'A_Wv': _A_in['Wv'], 'A_Wo': _A_in['Wo'], 'A_seg_len': _A_in['seg_len'], 'B_x': _B_in['x'], 'B_w1': _B_in['w1'], 'B_b1': _B_in['b1'], 'B_w2': _B_in['w2'], 'B_b2': _B_in['b2']}

def reference(A_x, A_mem0, A_Wq, A_Wk, A_Wv, A_Wo, A_seg_len, B_x, B_w1, B_b1, B_w2, B_b2):

    def _A_ref(x, mem0, Wq, Wk, Wv, Wo, seg_len):
        B, S, Dm = x.shape
        H, Dh = (Wq.shape[1], Wq.shape[2])
        M = mem0.shape[1]
        scale = Dh ** (-0.5)
        n_seg = S // seg_len
        L = M + seg_len
        idx = torch.arange(L)
        mask = (idx[:, None] < M) | (idx[:, None] >= idx[None, :])
        mem = mem0
        outs = []
        for s in range(n_seg):
            xs = x[:, s * seg_len:(s + 1) * seg_len, :].clone()
            h = torch.concatenate([mem, xs], axis=1)
            q = torch.einsum('btd,dhe->bhte', h, Wq)
            k = torch.einsum('btd,dhe->bhte', h, Wk)
            v = torch.einsum('btd,dhe->bhte', h, Wv)
            scores = torch.einsum('bhqe,bhke->bhqk', q, k) * scale
            scores = torch.where(mask[None, None], scores, -1000000000.0)
            p = _softmax(scores, axis=-1)
            o = torch.einsum('bhqk,bhke->bhqe', p, v)
            o = torch.einsum('bhte,hed->btd', o, Wo)
            mem = o[:, :M, :].clone()
            outs.append(o[:, M:, :])
        return torch.concatenate(outs, axis=1)

    def _B_ref(x, w1, b1, w2, b2):
        B, S, D = x.shape
        h = _layernorm(x, axis=-1)
        u = torch.einsum('bsd,sf->bdf', h, w1) + b1
        u = _gelu(u)
        y = torch.einsum('bdf,fs->bds', u, w2) + b2
        return (lambda x, *d: x.permute(*d))(y, 0, 2, 1)
    x = A_x
    h = x + _A_ref(_layernorm(x, axis=-1), A_mem0, A_Wq, A_Wk, A_Wv, A_Wo, A_seg_len)
    h2 = h + _B_ref(_layernorm(h, axis=-1), B_w1, B_b1, B_w2, B_b2)
    return h2
```

```python
MB = 1 << 20
WS_Q    = 0 * MB
WS_K    = 16 * MB
WS_VT   = 32 * MB
WS_KM   = 48 * MB
WS_VMT  = 52 * MB
WS_PART = 56 * MB
WS_FRAG = 57 * MB
WS_O    = 64 * MB
WS_P2   = 80 * MB
WS_H    = 112 * MB
WS_HN   = 114 * MB
WS_U    = 118 * MB
WS_XN   = 122 * MB
WS_SIZE = 256 * MB

KA_X, KA_MEM0, KA_WQ, KA_WK, KA_WV, KA_WO, KA_SEG, KA_BX, KA_W1, KA_B1, KA_W2, KA_B2, KA_OUT, KA_DBG, KA_WS = [8*i for i in range(15)]

class Asm:
    def __init__(self):
        self.lines = []
        self.uid = 0
    def __call__(self, s):
        for ln in s.strip("\n").split("\n"):
            self.lines.append("    " + ln.strip() if not ln.strip().endswith(":") else ln.strip())
    def label(self, name):
        self.lines.append(name + ":")
    def newlabel(self, base):
        self.uid += 1
        return f"L_{base}_{self.uid}"
    def comment(self, s):
        self.lines.append("    ; " + s)
    def text(self):
        return "\n".join(self.lines) + "\n"

def vr(base, n=1):
    if isinstance(base, int): base = ('v', base)
    k, i = base
    return f"{k}{i}" if n == 1 else f"{k}[{i}:{i+n-1}]"

def srd(a, sbase, ptr_lo, nbytes):
    a(f"s_mov_b32 s{sbase}, s{ptr_lo}")
    a(f"s_and_b32 s{sbase+1}, s{ptr_lo+1}, 0xffff")
    a(f"s_mov_b32 s{sbase+2}, {nbytes}")
    a(f"s_mov_b32 s{sbase+3}, 0x00020000")

def kernel_header(name):
    return f""".globl {name}
.p2align 8
.type {name},@function
{name}:
"""
def kernel_desc(name, vgpr, sgpr, accum):
    return f""".p2align 6
.amdhsa_kernel {name}
  .amdhsa_next_free_vgpr {vgpr}
  .amdhsa_next_free_sgpr {sgpr}
  .amdhsa_accum_offset {accum}
  .amdhsa_group_segment_fixed_size 0
  .amdhsa_kernarg_size 120
  .amdhsa_user_sgpr_count 2
  .amdhsa_user_sgpr_kernarg_segment_ptr 1
  .amdhsa_system_sgpr_workgroup_id_x 1
.end_amdhsa_kernel
"""
def interleave(main, fill, start=0, per=1):
    out = []; fi = 0
    for i, m in enumerate(main):
        out.append(m)
        if i >= start:
            for _ in range(per):
                if fi < len(fill):
                    out.append(fill[fi]); fi += 1
    out.extend(fill[fi:])
    return out
```

```python
from common import *
class GemmRegs:
    def __init__(self, base):
        self.VOFF = base
        self.RAW = base + 8
        self.BF = self.RAW + 64
        self.AFR = self.BF + 32
        self.end = self.AFR + 64

def gemm_loop(a, R, MT, nks, swapped, srdW, sWoff, wrow_bytes, sSELA, sSELB, act, acc, tag, sCNT, ld_flag=""):
    assert nks % 4 == 0
    glb = act['kind'] == 'glb'
    NL = 8 + (MT if glb else 0)
    def wloads(st):
        L = [f"buffer_load_dwordx2 {vr(R.RAW+16*st+2*i,2)}, v{R.VOFF+i}, s[{srdW}:{srdW+3}], s{sWoff} offen" for i in range(8)]
        if glb:
            for mt in range(MT):
                L.append(f"buffer_load_dwordx4 {vr(R.AFR+16*st+4*mt,4)}, v{act['voff']}, s[{act['srd']}:{act['srd']+3}], s{act['soff'][mt]} offen {ld_flag}")
            for mt in range(MT):
                L.append(f"s_add_u32 s{act['soff'][mt]}, s{act['soff'][mt]}, {act['step']}")
        L.append(f"s_add_u32 s{sWoff}, s{sWoff}, {16*wrow_bytes}")
        return L
    def perms(st, bf):
        L = []
        for t in range(4):
            for d in range(4):
                x0 = R.RAW + 16*st + 2*(2*d) + t//2
                x1 = R.RAW + 16*st + 2*(2*d+1) + t//2
                L.append(f"v_perm_b32 v{R.BF+16*bf+4*t+d}, v{x1}, v{x0}, s{sSELA if t%2==0 else sSELB}")
        return L
    def areads(buf, koff):
        return [f"ds_read_b128 {vr(R.AFR+16*buf+4*mt,4)}, v{act['vaddr'][mt]} offset:{koff*act['step']}" for mt in range(MT)]
    def mfmas(j, first):
        ab = (j % 4) if glb else (j % 2)
        L = []
        for t in range(4):
            for mt in range(MT):
                A = vr(R.AFR+16*ab+4*mt,4); B = vr(R.BF+16*(j%2)+4*t,4)
                if swapped: A, B = B, A
                c = acc(mt,t)
                L.append(f"v_mfma_f32_32x32x16_bf16 {vr(c,16)}, {A}, {B}, {'0' if first else vr(c,16)}")
        return L
    for st in range(4 if not glb else 3):
        for x in wloads(st): a(x)
    npro = 4 if not glb else 3
    if not glb:
        for x in areads(0, 0): a(x)
    a(f"s_waitcnt vmcnt({(npro-1)*NL})")
    for x in perms(0, 0): a(x)
    a("s_waitcnt lgkmcnt(0)")
    def kstep(j, first):
        M = mfmas(j, first)
        if glb:
            fill = wloads((j+3) % 4) + [f"s_waitcnt vmcnt({2*NL})"] + perms((j+1) % 4, (j+1) % 2)
        else:
            fill = areads((j+1) % 2, j+1) + wloads(j % 4) + [f"s_waitcnt vmcnt({3*NL})"] + perms((j+1) % 4, (j+1) % 2) + ["s_waitcnt lgkmcnt(0)"]
        per = -(-len(fill) // (len(M) - 1))
        for x in interleave(M, fill, per=per): a(x)
        a("s_nop 0")
    for j in range(4): kstep(j, j == 0)
    if nks > 4:
        a(f"s_mov_b32 s{sCNT}, {nks//4 - 1}")
        lab = a.newlabel("g"+tag)
        a.label(lab)
        if not glb:
            for mt in range(MT): a(f"v_add_u32 v{act['vaddr'][mt]}, {4*act['step']}, v{act['vaddr'][mt]}")
        for j in range(4): kstep(j, False)
        a(f"s_sub_u32 s{sCNT}, s{sCNT}, 1")
        a(f"s_cmp_lg_u32 s{sCNT}, 0")
        a(f"s_cbranch_scc1 {lab}")
    a("s_nop 7"); a("s_nop 7")

def setup_voff(a, R, vl, tmp, wrow_bytes):
    a(f"v_lshrrev_b32 v{tmp}, 5, v{vl}")
    a(f"v_mul_u32_u24 v{tmp}, {8*wrow_bytes}, v{tmp}")
    a(f"v_and_b32 v{R.VOFF}, 31, v{vl}")
    a(f"v_lshl_add_u32 v{R.VOFF}, v{R.VOFF}, 3, v{tmp}")
    for i in range(1, 8):
        a(f"v_add_u32 v{R.VOFF+i}, {i*wrow_bytes}, v{R.VOFF}")

def round_bf16(a, v, tmp=None):
    a(f"v_cvt_pk_bf16_f32 v{v}, v{v}, v{v}")
    a(f"v_lshlrev_b32 v{v}, 16, v{v}")

def row16_sum(a, v):
    for r in (8, 4, 2, 1):
        a("s_nop 1")
        a(f"v_add_f32_dpp v{v}, v{v}, v{v} row_ror:{r} row_mask:0xf bank_mask:0xf")
```

```python
from common import *
import struct, math
def f2u(x): return struct.unpack('<I', struct.pack('<f', x))[0]
LDS_AW = 65536
def gen_aw(a):
    sW, sHQ, sCH, sSEG, sT0, sT1, sC, sSELA, sSELB, sQ, sK, sV, sM, sOUT, sCNT, sONE = 4,5,6,7,20,21,22,23,24,25,26,27,28,29,30,31
    SRD_WS, SRD_W = 8, 12
    sKA = 16
    sMASK = 32
    WS = f"s[{SRD_WS}:{SRD_WS+3}]"
    vL, vL16, vKM, vOW, vOR, vST, vNEG, vT0, vT1, vT2 = 1,2,3,4,5,6,7,8,9,10
    ONES = 12
    QF, KF, VF, KMF, VMF = 16, 48, 80, 112, 128
    S = 136
    PMQ = 160
    OA = 168
    LA = 184
    OP = 192
    WACC = 200
    AFR = 232
    a("s_cmp_ge_u32 s2, 256")
    a("s_cbranch_scc1 L_aw_exit")
    a(f"s_load_dwordx2 s[{sKA}:{sKA+1}], s[0:1], {KA_WO}")
    a(f"s_load_dwordx2 s[{sKA+2}:{sKA+3}], s[0:1], {KA_WS}")
    a(f"v_lshrrev_b32 v{vT0}, 6, v0")
    a(f"v_and_b32 v{vL}, 63, v0")
    a(f"v_readfirstlane_b32 s{sW}, v{vT0}")
    a(f"s_and_b32 s{sHQ}, s2, 7")
    a(f"s_bfe_u32 s{sCH}, s2, 0x10003")
    a(f"s_lshr_b32 s{sSEG}, s2, 4")
    a(f"s_lshl_b32 s{sSEG}, s{sSEG}, 2")
    a(f"s_mov_b32 s{sSELA}, 0x05040100")
    a(f"s_mov_b32 s{sSELB}, 0x07060302")
    a(f"s_mov_b32 s{sC}, 0x{f2u((128 ** -0.5) * math.log2(math.e)):08x}")
    a("s_waitcnt lgkmcnt(0)")
    srd(a, SRD_WS, sKA+2, WS_SIZE)
    srd(a, SRD_W, sKA, 4*MB)
    a(f"v_lshlrev_b32 v{vL16}, 4, v{vL}")
    a(f"s_lshl_b32 s{sT0}, s{sHQ}, 2")
    a(f"s_add_u32 s{sT0}, s{sT0}, s{sW}")
    a(f"s_lshl_b32 s{sT1}, s{sSEG}, 5")
    a(f"s_add_u32 s{sT0}, s{sT0}, s{sT1}")
    a(f"s_lshl_b32 s{sM}, s{sT0}, 12")
    a(f"s_lshl_b32 s{sT0}, s{sT0}, 13")
    a(f"s_add_u32 s{sQ}, s{sT0}, {WS_Q}")
    a(f"s_add_u32 s{sK}, s{sT0}, {WS_K}")
    a(f"s_add_u32 s{sV}, s{sT0}, {WS_VT}")
    a(f"s_add_u32 s{sM}, s{sM}, {WS_KM}")
    a(f"v_bfe_u32 v{vT0}, v{vL}, 2, 2")
    a(f"v_lshlrev_b32 v{vKM}, 8, v{vT0}")
    a(f"v_lshrrev_b32 v{vT1}, 4, v{vL}")
    a(f"v_lshl_add_u32 v{vKM}, v{vT1}, 6, v{vKM}")
    a(f"v_and_b32 v{vT2}, 1, v{vL}")
    a(f"v_lshl_add_u32 v{vKM}, v{vT2}, 2, v{vKM}")
    def seg_loads():
        L = []
        for i in range(8):
            if i == 4: L.append(f"s_add_u32 s{sT0}, s{sQ}, 4096")
            L.append(f"buffer_load_dwordx4 {vr(QF+4*i,4)}, v{vL16}, {WS}, s{sQ if i<4 else sT0} offen offset:{1024*(i%4)}")
        for i in range(8):
            if i == 4: L.append(f"s_add_u32 s{sT0}, s{sK}, 4096")
            L.append(f"buffer_load_dwordx4 {vr(KF+4*i,4)}, v{vL16}, {WS}, s{sK if i<4 else sT0} offen offset:{1024*(i%4)}")
        for ks in range(4):
            for j in range(4):
                L.append(f"buffer_load_dword v{KMF+4*ks+j}, v{vKM}, {WS}, s{sM} offen offset:{1024*ks+16*j}")
        for i in range(8):
            if i == 4: L.append(f"s_add_u32 s{sT0}, s{sV}, 4096")
            L.append(f"buffer_load_dwordx4 {vr(VF+4*i,4)}, v{vL16}, {WS}, s{sV if i<4 else sT0} offen offset:{1024*(i%4)}")
        for w in range(4):
            L.append(f"buffer_load_dwordx2 {vr(VMF+2*w,2)}, v{vL16}, {WS}, s{sM} offen offset:{1024*w+8}")
        for s in (sQ, sK, sV): L.append(f"s_add_u32 s{s}, s{s}, {32*8192}")
        L.append(f"s_add_u32 s{sM}, s{sM}, {32*4096}")
        return L
    for x in seg_loads(): a(x)
    vWO = vT2
    a(f"v_lshrrev_b32 v{vT0}, 5, v{vL}")
    a(f"v_lshlrev_b32 v{vT0}, 13, v{vT0}")
    a(f"v_and_b32 v{vT1}, 31, v{vL}")
    a(f"v_lshl_add_u32 v{vWO}, v{vT1}, 2, v{vT0}")
    a(f"v_add_u32 v{vT1}, 4096, v{vWO}")
    a(f"s_lshl_b32 s{sT0}, s{sHQ}, 19")
    a(f"s_lshl_b32 s{sT1}, s{sCH}, 9")
    a(f"s_add_u32 s{sT0}, s{sT0}, s{sT1}")
    a(f"s_lshl_b32 s{sT1}, s{sW}, 7")
    a(f"s_add_u32 s{sOUT}, s{sT0}, s{sT1}")
    RAW = 136
    NS = 6
    def wl(ks):
        st = ks % NS
        for i in range(8):
            a(f"buffer_load_dword v{RAW+8*st+i}, v{vWO if i<4 else vT1}, s[{SRD_W}:{SRD_W+3}], s{sOUT} offen offset:{1024*(i%4)}")
        a(f"s_add_u32 s{sOUT}, s{sOUT}, 16384")
    for ks in range(NS): wl(ks)
    for ks in range(32):
        st = ks % NS
        a(f"s_waitcnt vmcnt({8*(min(31,ks+NS-1)-ks)})")
        for t in range(2):
            for d in range(4):
                a(f"v_perm_b32 v{184+4*t+d}, v{RAW+8*st+2*d+1}, v{RAW+8*st+2*d}, s{sSELA if t==0 else sSELB}")
        if ks+NS < 32: wl(ks+NS)
        for j in range(8): a(f"v_accvgpr_write_b32 a{ks*8+j}, v{184+j}")
    a(f"v_and_b32 v{vT0}, 12, v{vL}")
    a(f"v_and_b32 v{vT1}, 15, v{vL}")
    a(f"v_add_u32 v{vT0}, v{vT0}, v{vT1}")
    a(f"v_lshrrev_b32 v{vT1}, 4, v{vL}")
    a(f"v_lshlrev_b32 v{vT2}, 3, v{vT1}")
    a(f"v_sub_u32 v{vT0}, v{vT0}, v{vT2}")
    for z in range(-4, 8):
        a(f"v_cmp_le_i32 s[{sMASK+2*(z+4)}:{sMASK+2*(z+4)+1}], {z}, v{vT0}")
    a(f"v_mov_b32 v{vNEG}, 0xff7fffff")
    for j in range(4): a(f"v_mov_b32 v{ONES+j}, 0x3f803f80")
    a(f"v_lshlrev_b32 v{vOW}, 9, v{vT1}")
    a(f"v_and_b32 v{vT0}, 15, v{vL}")
    a(f"v_lshl_add_u32 v{vOW}, v{vT0}, 4, v{vOW}")
    a(f"s_lshl_b32 s{sT0}, s{sW}, 13")
    a(f"v_add_u32 v{vOW}, s{sT0}, v{vOW}")
    a(f"v_mov_b32 v{vOR}, v{vL16}")
    a(f"v_and_b32 v{vT0}, 3, v{vL}")
    a(f"v_bfe_u32 v{vT1}, v{vL}, 2, 2")
    a(f"v_lshl_add_u32 v{vT0}, v{vT1}, 3, v{vT0}")
    a(f"v_bfe_u32 v{vT1}, v{vL}, 4, 1")
    a(f"v_lshl_add_u32 v{vT0}, v{vT1}, 2, v{vT0}")
    a(f"v_lshrrev_b32 v{vT1}, 5, v{vL}")
    a(f"v_lshlrev_b32 v{vT1}, 9, v{vT1}")
    a(f"v_lshl_add_u32 v{vST}, v{vT0}, 4, v{vT1}")
    a(f"s_lshl_b32 s{sT0}, s{sHQ}, 6")
    a(f"s_add_u32 s{sT0}, s{sT0}, s{sSEG}")
    a(f"s_lshl_b32 s{sT0}, s{sT0}, 3")
    a(f"s_lshl_b32 s{sT1}, s{sCH}, 2")
    a(f"s_add_u32 s{sT0}, s{sT0}, s{sT1}")
    a(f"s_add_u32 s{sT0}, s{sT0}, s{sW}")
    a(f"s_lshl_b32 s{sOUT}, s{sT0}, 12")
    a(f"s_add_u32 s{sOUT}, s{sOUT}, {WS_P2}")
    a(f"s_mov_b32 s{sCNT}, 4")
    def mf(d, A, B, c): return f"v_mfma_f32_16x16x32_bf16 {vr(d,4)}, {vr(A,4)}, {vr(B,4)}, {c}"
    def mf16(d, A, B): return f"v_mfma_f32_16x16x16_bf16 {vr(d,4)}, {vr(A,2)}, {vr(B,2)}, {vr(d,4)}"
    a.label("L_aw_loop")
    a("s_waitcnt vmcnt(0)")
    for ks in range(4):
        for Y in range(2):
            for X in range(3):
                d = S + 12*Y + 4*X
                A = KF + 16*X + 4*ks if X < 2 else KMF + 4*ks
                a(mf(d, A, QF+16*Y+4*ks, "0" if ks == 0 else vr(d,4)))
    a("s_nop 4")
    for Y in range(2):
        b = S + 12*Y
        for X in range(2):
            for i in range(4):
                z = 4*X + i - 4*Y
                a(f"v_cndmask_b32 v{b+4*X+i}, v{vNEG}, v{b+4*X+i}, s[{sMASK+2*(z+4)}:{sMASK+2*(z+4)+1}]")
    tm = [vT0, vT1]; tt = [vT2, 11]
    for Y in range(2):
        b = S + 12*Y; m = tm[Y]; t = tt[Y]
        a(f"v_max3_f32 v{m}, v{b}, v{b+1}, v{b+2}")
        a(f"v_max3_f32 v{t}, v{b+3}, v{b+4}, v{b+5}")
        a(f"v_max3_f32 v{m}, v{m}, v{b+6}, v{b+7}")
        a(f"v_max3_f32 v{t}, v{t}, v{b+8}, v{b+9}")
        a(f"v_max_f32 v{m}, v{m}, v{t}")
    for op in ("v_permlane16_swap_b32", "v_permlane32_swap_b32"):
        for Y in range(2): a(f"v_mov_b32 v{tt[Y]}, v{tm[Y]}")
        a("s_nop 1")
        for Y in range(2): a(f"{op} v{tm[Y]}, v{tt[Y]}")
        for Y in range(2): a(f"v_max_f32 v{tm[Y]}, v{tm[Y]}, v{tt[Y]}")
    for Y in range(2): a(f"v_mul_f32 v{tm[Y]}, s{sC}, v{tm[Y]}")
    for Y in range(2):
        b = S + 12*Y
        for i in range(10): a(f"v_fma_f32 v{b+i}, v{b+i}, s{sC}, -v{tm[Y]}")
        for i in range(10): a(f"v_exp_f32 v{b+i}, v{b+i}")
    a("s_nop 0")
    for Y in range(2):
        b = S + 12*Y
        for j in range(4): a(f"v_cvt_pk_bf16_f32 v{b+j}, v{b+2*j}, v{b+2*j+1}")
        p = PMQ + 4*Y
        a(f"v_cvt_pk_bf16_f32 v{p}, v{b+8}, v{b+9}")
        a(f"v_mov_b32 v{p+1}, 0")
        a(f"v_mov_b32 v{p+2}, 0")
        a(f"v_mov_b32 v{p+3}, v{p}")
    a("s_nop 1")
    for Y in range(2):
        a(mf(LA+4*Y, ONES, S+12*Y, "0"))
    for Y in range(2):
        a(mf16(LA+4*Y, ONES, PMQ+4*Y))
    units = [(Y, w) for Y in range(2) for w in range(4)]
    def pv(n):
        Y, w = units[n]; o = OA + 8*(n%2)
        for b in range(2): a(mf(o+4*b, VF+8*w+4*b, S+12*Y, "0"))
        for b in range(2): a(mf16(o+4*b, VMF+2*w, PMQ+4*Y+2*b))
    def fin(n):
        Y, w = units[n]; o = OA + 8*(n%2); p = OP + 4*(n%2)
        for i in range(8): a(f"v_mul_f32 v{o+i}, v{o+i}, v{LA+4*Y}")
        for i in range(4): a(f"v_cvt_pk_bf16_f32 v{p+i}, v{o+i}, v{o+4+i}")
        a(f"ds_write_b128 v{vOW}, {vr(p,4)} offset:{w*2048+Y*256}")
    pv(0)
    a("s_nop 3")
    for Y in range(2): a(f"v_rcp_f32 v{LA+4*Y}, v{LA+4*Y}")
    for n in range(8):
        if n+1 < 8: pv(n+1)
        else: a("s_nop 7")
        a("s_nop 3")
        fin(n)
    a("s_waitcnt lgkmcnt(0)")
    a("s_barrier")
    nl = seg_loads()
    for j in range(3): a(f"ds_read_b128 {vr(AFR+4*j,4)}, v{vOR} offset:{1024*j}")
    li = 0
    for ks in range(32):
        if ks+3 < 32: a(f"ds_read_b128 {vr(AFR+4*((ks+3)%4),4)}, v{vOR} offset:{1024*(ks+3)}")
        a(f"s_waitcnt lgkmcnt({min(3, 31-ks)})")
        for t in range(2):
            c = WACC + 16*t
            a(f"v_mfma_f32_32x32x16_bf16 {vr(c,16)}, a[{ks*8+4*t}:{ks*8+4*t+3}], {vr(AFR+4*(ks%4),4)}, {'0' if ks==0 else vr(c,16)}")
            for _ in range(1):
                if li < len(nl): a(nl[li]); li += 1
    while li < len(nl): a(nl[li]); li += 1
    a("s_nop 7"); a("s_nop 3")
    for q in range(4):
        p = OP + 4*(q%2)
        for j in range(4): a(f"v_cvt_pk_bf16_f32 v{p+j}, v{WACC+4*q+j}, v{WACC+16+4*q+j}")
        a(f"buffer_store_dwordx4 {vr(p,4)}, v{vST}, {WS}, s{sOUT} offen offset:{1024*q}")
    a(f"s_add_u32 s{sOUT}, s{sOUT}, {8*4096}")
    a(f"v_xor_b32 v{vOW}, 32768, v{vOW}")
    a(f"v_xor_b32 v{vOR}, 32768, v{vOR}")
    a(f"s_sub_u32 s{sCNT}, s{sCNT}, 1")
    a(f"s_cmp_lg_u32 s{sCNT}, 0")
    a("s_cbranch_scc1 L_aw_loop")
    a("s_waitcnt vmcnt(0)")
    a.label("L_aw_exit")
    a("s_endpgm")
```

```python
from common import *
from gemm import *
import struct
def f2u(x): return struct.unpack('<I', struct.pack('<f', x))[0]
PANEL_BLK = 1056
PANEL_MT = 32*PANEL_BLK
LDS_QKV = 4*PANEL_MT

def ln_rows(a, X, F, T, sONES, n_dw=16):
    s, m0, m1, q0, q1, t = T, T+2, T+3, T+4, T+5, T+1
    a(f"v_mov_b32 v{s}, 0")
    for i in range(n_dw): a(f"v_dot2_f32_bf16 v{s}, v{X+i}, s{sONES}, v{s}")
    a("s_nop 2")
    row16_sum(a, s)
    a(f"v_mul_f32 v{m0}, 0x{f2u(-1.0/512):08x}, v{s}")
    round_bf16(a, m0)
    a(f"v_mov_b32 v{m1}, v{m0}")
    for i in range(n_dw):
        a(f"v_lshlrev_b32 v{F+2*i}, 16, v{X+i}")
        a(f"v_and_b32 v{F+2*i+1}, 0xffff0000, v{X+i}")
    for i in range(n_dw): a(f"v_pk_add_f32 v[{F+2*i}:{F+2*i+1}], v[{F+2*i}:{F+2*i+1}], v[{m0}:{m1}]")
    a(f"v_pk_mul_f32 v[{q0}:{q1}], v[{F}:{F+1}], v[{F}:{F+1}]")
    for i in range(1, n_dw): a(f"v_pk_fma_f32 v[{q0}:{q1}], v[{F+2*i}:{F+2*i+1}], v[{F+2*i}:{F+2*i+1}], v[{q0}:{q1}]")
    a(f"v_add_f32 v{q0}, v{q0}, v{q1}")
    row16_sum(a, q0)
    a(f"v_mul_f32 v{q0}, 0x{f2u(1.0/512):08x}, v{q0}")
    round_bf16(a, q0)
    a(f"v_add_f32 v{q0}, 0x{f2u(1e-5):08x}, v{q0}")
    round_bf16(a, q0)
    a(f"v_sqrt_f32 v{q0}, v{q0}")
    a("s_nop 0")
    round_bf16(a, q0)
    a(f"v_rcp_f32 v{q0}, v{q0}")
    a("s_nop 0")
    a(f"v_mov_b32 v{q1}, v{q0}")
    for i in range(n_dw): a(f"v_pk_mul_f32 v[{F+2*i}:{F+2*i+1}], v[{F+2*i}:{F+2*i+1}], v[{q0}:{q1}]")
    for i in range(n_dw): a(f"v_cvt_pk_bf16_f32 v{X+i}, v{F+2*i}, v{F+2*i+1}")

def gen_qkv(a, st_flag=""):
    sW, sRB, sSLOT, sT0, sT1, sCNT, sWoff, sSELA, sSELB, sONES, sOUT, sHM = 4,5,6,7,20,21,22,23,24,25,26,27
    SRD_WS, SRD_X, SRD_W = 8, 12, 16
    sKA = 32
    vL, vT0, vT1, vT2, vOK, vOV = 1, 2, 3, 4, 5, 6
    vA = 8
    vAK, vAV = 12, 13
    R = GemmRegs(16)
    a("s_cmp_ge_u32 s2, 256")
    a("s_cbranch_scc1 L_qkv_exit")
    a(f"s_load_dwordx2 s[{sKA}:{sKA+1}], s[0:1], {KA_X}")
    a(f"s_load_dwordx4 s[{sKA+4}:{sKA+7}], s[0:1], {KA_WQ}")
    a(f"s_load_dwordx2 s[{sKA+8}:{sKA+9}], s[0:1], {KA_WV}")
    a(f"s_load_dwordx2 s[{sKA+10}:{sKA+11}], s[0:1], {KA_WS}")
    a(f"v_lshrrev_b32 v{vT0}, 6, v0")
    a(f"v_and_b32 v{vL}, 63, v0")
    a(f"v_readfirstlane_b32 s{sW}, v{vT0}")
    a(f"s_lshr_b32 s{sT0}, s2, 3")
    a(f"s_and_b32 s{sRB}, s{sT0}, 15")
    a(f"s_lshr_b32 s{sT0}, s{sT0}, 4")
    a(f"s_and_b32 s{sSLOT}, s2, 7")
    a(f"s_lshl_b32 s{sSLOT}, s{sSLOT}, 1")
    a(f"s_add_u32 s{sSLOT}, s{sSLOT}, s{sT0}")
    a(f"s_mov_b32 s{sSELA}, 0x05040100")
    a(f"s_mov_b32 s{sSELB}, 0x07060302")
    a(f"s_mov_b32 s{sONES}, 0x3f803f80")
    a("s_waitcnt lgkmcnt(0)")
    srd(a, SRD_WS, sKA+10, WS_SIZE)
    srd(a, SRD_X, sKA, 2*MB)
    X = 64
    a(f"v_lshrrev_b32 v{vT0}, 4, v{vL}")
    a(f"v_and_b32 v{vT1}, 15, v{vL}")
    a(f"v_lshlrev_b32 v{vT2}, 4, v{vT1}")
    a(f"v_lshl_add_u32 v{vT2}, v{vT0}, 10, v{vT2}")
    a(f"s_lshl_b32 s{sT0}, s{sRB}, 17")
    a(f"s_lshl_b32 s{sT1}, s{sW}, 15")
    a(f"s_add_u32 s{sT0}, s{sT0}, s{sT1}")
    for p in range(8):
        for u in range(4):
            a(f"buffer_load_dwordx4 {vr(X+16*p+4*u,4)}, v{vT2}, s[{SRD_X}:{SRD_X+3}], s{sT0} offen offset:{256*u}")
        a(f"s_add_u32 s{sT0}, s{sT0}, 4096")
    a(f"v_lshlrev_b32 v{vOK}, 2, v0")
    a(f"v_lshlrev_b32 v{vOV}, 3, v0")
    a(f"v_mov_b32 v8, 0")
    a(f"v_mov_b32 v10, -1")
    a(f"v_mov_b32 v11, -1")
    a(f"s_lshl_b32 s{sT0}, s2, 10")
    a(f"s_add_u32 s{sT0}, s{sT0}, {WS_PART}")
    a(f"buffer_store_dword v8, v{vOK}, s[{SRD_WS}:{SRD_WS+3}], s{sT0} offen")
    a(f"s_lshl_b32 s{sT0}, s2, 11")
    a(f"s_add_u32 s{sT0}, s{sT0}, {WS_FRAG}")
    a(f"buffer_store_dwordx2 v[10:11], v{vOV}, s[{SRD_WS}:{SRD_WS+3}], s{sT0} offen")
    vWA = 7
    a(f"v_mul_u32_u24 v{vWA}, 528, v{vT1}")
    a(f"v_lshl_add_u32 v{vWA}, v{vT0}, 4, v{vWA}")
    a(f"s_mul_i32 s{sT0}, s{sW}, {PANEL_MT}")
    a(f"v_add_u32 v{vWA}, s{sT0}, v{vWA}")
    F = 192; TT = 224
    for p in range(8):
        a(f"s_waitcnt vmcnt({(7-p)*4+2})")
        ln_rows(a, X+16*p, F, TT, sONES)
        for u in range(4):
            a(f"ds_write_b128 v{vWA}, {vr(X+16*p+4*u,4)} offset:{u*8448 + p*64}")
    setup_voff(a, R, vL, vT0, 8192)
    a(f"v_and_b32 v{vT0}, 3, v{vL}")
    a(f"v_bfe_u32 v{vT1}, v{vL}, 2, 2")
    a(f"v_lshl_add_u32 v{vT0}, v{vT1}, 3, v{vT0}")
    a(f"v_bfe_u32 v{vT1}, v{vL}, 4, 1")
    a(f"v_lshl_add_u32 v{vT0}, v{vT1}, 2, v{vT0}")
    a(f"v_lshrrev_b32 v{vT2}, 5, v{vL}")
    a(f"v_mul_u32_u24 v{vT2}, 528, v{vT2}")
    a(f"v_lshl_add_u32 v{vAK}, v{vT0}, 4, v{vT2}")
    a(f"v_and_b32 v{vT0}, 19, v{vL}")
    a(f"v_bfe_u32 v{vT1}, v{vL}, 2, 1")
    a(f"v_lshl_add_u32 v{vT0}, v{vT1}, 3, v{vT0}")
    a(f"v_bfe_u32 v{vT1}, v{vL}, 3, 1")
    a(f"v_lshl_add_u32 v{vT0}, v{vT1}, 2, v{vT0}")
    a(f"v_lshl_add_u32 v{vAV}, v{vT0}, 4, v{vT2}")
    a(f"v_and_b32 v{vT0}, 15, v{vL}")
    a(f"v_lshlrev_b32 v{vOK}, 4, v{vT0}")
    a(f"v_bfe_u32 v{vT1}, v{vL}, 4, 1")
    a(f"v_lshl_add_u32 v{vOK}, v{vT1}, 12, v{vOK}")
    a(f"v_lshrrev_b32 v{vT1}, 5, v{vL}")
    a(f"v_lshl_add_u32 v{vOK}, v{vT1}, 9, v{vOK}")
    a(f"v_lshlrev_b32 v{vOV}, 8, v{vT1}")
    a(f"v_and_b32 v{vT0}, 7, v{vL}")
    a(f"v_lshl_add_u32 v{vOV}, v{vT0}, 5, v{vOV}")
    a(f"v_bfe_u32 v{vT0}, v{vL}, 3, 2")
    a(f"v_lshl_add_u32 v{vOV}, v{vT0}, 11, v{vOV}")
    a("s_waitcnt lgkmcnt(0)")
    a("s_barrier")
    acc = lambda mt, t: ('a', (mt*4+t)*16)
    E = 224
    WS = f"s[{SRD_WS}:{SRD_WS+3}]"
    def epi_k(MT):
        n = 0
        for mt in range(MT):
            for q in range(4):
                for u in range(2):
                    b = E + (n % 2)*12; n += 1
                    for rr in range(2):
                        for t in range(4):
                            a(f"v_accvgpr_read_b32 v{b+4*rr+t}, a{acc(mt,t)[1]+4*q+2*u+rr}")
                    for rr in range(2):
                        a(f"v_cvt_pk_bf16_f32 v{b+8+2*rr}, v{b+4*rr}, v{b+4*rr+1}")
                        a(f"v_cvt_pk_bf16_f32 v{b+8+2*rr+1}, v{b+4*rr+2}, v{b+4*rr+3}")
                    a(f"buffer_store_dwordx4 {vr(b+8,4)}, v{vOK}, {WS}, s{sOUT} offen offset:{q*1024+u*256} {st_flag}")
            a(f"s_add_u32 s{sOUT}, s{sOUT}, {32*8192}")
    def epi_v():
        n = 0
        for mt in range(4):
            for t in range(4):
                for h2 in range(2):
                    b = E + (n % 2)*12; n += 1
                    for j in range(8): a(f"v_accvgpr_read_b32 v{b+j}, a{acc(mt,t)[1]+8*h2+j}")
                    for j in range(4): a(f"v_cvt_pk_bf16_f32 v{b+8+j}, v{b+2*j}, v{b+2*j+1}")
                    a(f"buffer_store_dwordx4 {vr(b+8,4)}, v{vOV}, {WS}, s{sOUT} offen offset:{(t%2)*1024+h2*512+(t//2)*16} {st_flag}")
            a(f"s_add_u32 s{sOUT}, s{sOUT}, {32*8192}")
    a(f"s_lshl_b32 s{sHM}, s{sSLOT}, 2")
    a(f"s_add_u32 s{sHM}, s{sHM}, s{sW}")
    a(f"s_and_b32 s{sT0}, s{sHM}, 31")
    a(f"s_lshl_b32 s{sWoff}, s{sT0}, 8")
    a(f"s_lshl_b32 s{sOUT}, s{sT0}, 13")
    a(f"s_lshl_b32 s{sT1}, s{sRB}, 20")
    a(f"s_add_u32 s{sOUT}, s{sOUT}, s{sT1}")
    a(f"s_cmp_ge_u32 s{sHM}, 32")
    a("s_cbranch_scc1 L_qkv_v")
    srd(a, SRD_W, sKA+6, 4*MB)
    a(f"s_add_u32 s{sOUT}, s{sOUT}, {WS_K}")
    for mt in range(4): a(f"v_add_u32 v{vA+mt}, {mt*PANEL_MT}, v{vAK}")
    gemm_loop(a, R, 4, 32, True, SRD_W, sWoff, 8192, sSELA, sSELB, dict(kind='lds', vaddr=[vA+i for i in range(4)], step=PANEL_BLK), acc, "k", sCNT)
    epi_k(4)
    a("s_branch L_qkv_q")
    a.label("L_qkv_v")
    srd(a, SRD_W, sKA+8, 4*MB)
    a(f"s_add_u32 s{sOUT}, s{sOUT}, {WS_VT}")
    for mt in range(4): a(f"v_add_u32 v{vA+mt}, {mt*PANEL_MT}, v{vAV}")
    gemm_loop(a, R, 4, 32, False, SRD_W, sWoff, 8192, sSELA, sSELB, dict(kind='lds', vaddr=[vA+i for i in range(4)], step=PANEL_BLK), acc, "v", sCNT)
    epi_v()
    a.label("L_qkv_q")
    srd(a, SRD_W, sKA+4, 4*MB)
    a(f"s_lshl_b32 s{sT0}, s{sSLOT}, 1")
    a(f"s_lshr_b32 s{sT1}, s{sW}, 1")
    a(f"s_add_u32 s{sT0}, s{sT0}, s{sT1}")
    a(f"s_lshl_b32 s{sWoff}, s{sT0}, 8")
    a(f"s_lshl_b32 s{sOUT}, s{sT0}, 13")
    a(f"s_lshl_b32 s{sT1}, s{sRB}, 20")
    a(f"s_add_u32 s{sOUT}, s{sOUT}, s{sT1}")
    a(f"s_and_b32 s{sT0}, s{sW}, 1")
    a(f"s_lshl_b32 s{sT1}, s{sT0}, 19")
    a(f"s_add_u32 s{sOUT}, s{sOUT}, s{sT1}")
    a(f"s_add_u32 s{sOUT}, s{sOUT}, {WS_Q}")
    a(f"s_mul_i32 s{sT0}, s{sT0}, {2*PANEL_MT}")
    a(f"v_add_u32 v{vA}, s{sT0}, v{vAK}")
    a(f"v_add_u32 v{vA+1}, {PANEL_MT}, v{vA}")
    gemm_loop(a, R, 2, 32, True, SRD_W, sWoff, 8192, sSELA, sSELB, dict(kind='lds', vaddr=[vA, vA+1], step=PANEL_BLK), acc, "q", sCNT)
    epi_k(2)
    a("s_waitcnt vmcnt(0)")
    a.label("L_qkv_exit")
    a("s_endpgm")
```

```python
from common import *
from gemm import *
import struct, math
def f2u(x): return struct.unpack('<I', struct.pack('<f', x))[0]

def xsum8(a, v, t):
    a("s_nop 1")
    a(f"v_add_f32_dpp v{v}, v{v}, v{v} row_ror:8 row_mask:0xf bank_mask:0xf")
    for op in ("v_permlane16_swap_b32", "v_permlane32_swap_b32"):
        a(f"v_mov_b32 v{t}, v{v}")
        a("s_nop 1")
        a(f"{op} v{v}, v{t}")
        a(f"v_add_f32 v{v}, v{v}, v{t}")

def ln_f32(a, F, n, T):
    s0, s1, m0, m1, t = T, T+1, T+2, T+3, T+4
    a(f"v_pk_add_f32 v[{s0}:{s1}], v[{F}:{F+1}], v[{F+2}:{F+3}]")
    for i in range(4, n, 2): a(f"v_pk_add_f32 v[{s0}:{s1}], v[{s0}:{s1}], v[{F+i}:{F+i+1}]")
    a(f"v_add_f32 v{s0}, v{s0}, v{s1}")
    xsum8(a, s0, t)
    a(f"v_mul_f32 v{m0}, 0x{f2u(-1.0/512):08x}, v{s0}")
    round_bf16(a, m0)
    a(f"v_mov_b32 v{m1}, v{m0}")
    for i in range(0, n, 2): a(f"v_pk_add_f32 v[{F+i}:{F+i+1}], v[{F+i}:{F+i+1}], v[{m0}:{m1}]")
    a(f"v_pk_mul_f32 v[{s0}:{s1}], v[{F}:{F+1}], v[{F}:{F+1}]")
    for i in range(2, n, 2): a(f"v_pk_fma_f32 v[{s0}:{s1}], v[{F+i}:{F+i+1}], v[{F+i}:{F+i+1}], v[{s0}:{s1}]")
    a(f"v_add_f32 v{s0}, v{s0}, v{s1}")
    xsum8(a, s0, t)
    a(f"v_mul_f32 v{s0}, 0x{f2u(1.0/512):08x}, v{s0}")
    round_bf16(a, s0)
    a(f"v_add_f32 v{s0}, 0x{f2u(1e-5):08x}, v{s0}")
    round_bf16(a, s0)
    a(f"v_sqrt_f32 v{s0}, v{s0}")
    a("s_nop 0")
    round_bf16(a, s0)
    a(f"v_rcp_f32 v{s0}, v{s0}")
    a("s_nop 0")
    a(f"v_mov_b32 v{s1}, v{s0}")
    for i in range(0, n, 2): a(f"v_pk_mul_f32 v[{F+i}:{F+i+1}], v[{F+i}:{F+i+1}], v[{s0}:{s1}]")

def pack(a, P, F, n):
    for i in range(n//2): a(f"v_cvt_pk_bf16_f32 v{P+i}, v{F+2*i}, v{F+2*i+1}")
def unpack(a, F, P, n):
    for i in range(n//2):
        a(f"v_lshlrev_b32 v{F+2*i}, 16, v{P+i}")
        a(f"v_and_b32 v{F+2*i+1}, 0xffff0000, v{P+i}")

LDS_LN2 = 8*1040
def gen_ln2(a):
    sT0, sT1, sP, sROW, sSELA, sSELB = 4,5,6,7,20,21
    SRD_WS, SRD_X = 8, 12
    sKA = 16
    WS = f"s[{SRD_WS}:{SRD_WS+3}]"
    vP, vX, vT0, vT1, vLW, vLR, vHN = 1,2,3,4,5,6,7
    T = 8
    F = 16
    XB = 80
    PB = 112
    a("s_cmp_ge_u32 s2, 256")
    a("s_cbranch_scc1 L_ln2_exit")
    a(f"s_load_dwordx2 s[{sKA}:{sKA+1}], s[0:1], {KA_X}")
    a(f"s_load_dwordx2 s[{sKA+2}:{sKA+3}], s[0:1], {KA_WS}")
    a(f"v_and_b32 v{vT0}, 7, v0")
    a(f"v_lshrrev_b32 v{vT1}, 3, v0")
    a(f"v_lshlrev_b32 v{vP}, 9, v{vT1}")
    a(f"v_lshl_add_u32 v{vP}, v{vT0}, 4, v{vP}")
    a(f"v_lshlrev_b32 v{vX}, 4, v{vT1}")
    a(f"v_lshl_add_u32 v{vX}, v{vT0}, 10, v{vX}")
    a(f"v_mul_u32_u24 v{vLW}, 1040, v{vT0}")
    a(f"v_lshl_add_u32 v{vLW}, v{vT1}, 4, v{vLW}")
    a(f"v_lshlrev_b32 v{vLR}, 2, v0")
    a(f"v_lshrrev_b32 v{vT0}, 4, v0")
    a(f"v_lshlrev_b32 v{vHN}, 17, v{vT0}")
    a(f"v_and_b32 v{vT0}, 15, v0")
    a(f"v_lshl_add_u32 v{vHN}, v{vT0}, 5, v{vHN}")
    a(f"s_mov_b32 s{sSELA}, 0x05040100")
    a(f"s_mov_b32 s{sSELB}, 0x07060302")
    a(f"s_lshr_b32 s{sT0}, s2, 2")
    a(f"s_lshl_b32 s{sP}, s{sT0}, 15")
    a(f"s_and_b32 s{sT1}, s2, 3")
    a(f"s_lshl_b32 s{sT1}, s{sT1}, 7")
    a(f"s_add_u32 s{sP}, s{sP}, s{sT1}")
    a(f"s_add_u32 s{sP}, s{sP}, {WS_P2}")
    a(f"s_lshl_b32 s{sROW}, s2, 13")
    a("s_waitcnt lgkmcnt(0)")
    srd(a, SRD_WS, sKA+2, WS_SIZE)
    srd(a, SRD_X, sKA, 2*MB)
    for c in range(8):
        a(f"buffer_load_dwordx4 {vr(XB+4*c,4)}, v{vX}, s[{SRD_X}:{SRD_X+3}], s{sROW} offen offset:{128*c}")
    def pl(hq):
        for c in range(8):
            a(f"s_add_u32 s{sT0}, s{sP}, {hq*64*8*4096 + c*4096}")
            a(f"buffer_load_dwordx4 {vr(PB+32*(hq%4)+4*c,4)}, v{vP}, {WS}, s{sT0} offen")
    for hq in range(4): pl(hq)
    for hq in range(8):
        a(f"s_waitcnt vmcnt({8*(min(7,hq+3)-hq)})")
        b = PB + 32*(hq%4)
        for i in range(32):
            if hq == 0:
                a(f"v_lshlrev_b32 v{F+2*i}, 16, v{b+i}")
                a(f"v_and_b32 v{F+2*i+1}, 0xffff0000, v{b+i}")
            else:
                a(f"v_lshlrev_b32 v{T}, 16, v{b+i}")
                a(f"v_and_b32 v{T+1}, 0xffff0000, v{b+i}")
                a(f"v_pk_add_f32 v[{F+2*i}:{F+2*i+1}], v[{F+2*i}:{F+2*i+1}], v[{T}:{T+1}]")
        if hq+4 < 8: pl(hq+4)
    pack(a, PB, F, 64); unpack(a, F, PB, 64)
    for i in range(32):
        a(f"v_lshlrev_b32 v{T}, 16, v{XB+i}")
        a(f"v_and_b32 v{T+1}, 0xffff0000, v{XB+i}")
        a(f"v_pk_add_f32 v[{F+2*i}:{F+2*i+1}], v[{F+2*i}:{F+2*i+1}], v[{T}:{T+1}]")
    pack(a, XB, F, 64)
    a(f"s_add_u32 s{sT0}, s{sROW}, {WS_H}")
    for c in range(8):
        a(f"buffer_store_dwordx4 {vr(XB+4*c,4)}, v{vX}, {WS}, s{sT0} offen offset:{128*c}")
    unpack(a, F, XB, 64)
    ln_f32(a, F, 64, T)
    pack(a, PB, F, 64); unpack(a, F, PB, 64)
    ln_f32(a, F, 64, T)
    pack(a, PB, F, 64)
    for c in range(8): a(f"ds_write_b128 v{vLW}, {vr(PB+4*c,4)} offset:{128*c}")
    a("s_waitcnt lgkmcnt(0)")
    for i in range(4):
        for tok in range(8): a(f"ds_read_b32 v{F+8*i+tok}, v{vLR} offset:{tok*1040+256*i}")
    a(f"s_lshl_b32 s{sT0}, s2, 9")
    a(f"s_add_u32 s{sT0}, s{sT0}, {WS_HN}")
    a("s_waitcnt lgkmcnt(0)")
    for i in range(4):
        o = PB + 8*i
        for b in range(2):
            for d in range(4):
                a(f"v_perm_b32 v{o+4*b+d}, v{F+8*i+2*d+1}, v{F+8*i+2*d}, s{sSELA if b==0 else sSELB}")
        for b in range(2):
            a(f"buffer_store_dwordx4 {vr(o+4*b,4)}, v{vHN}, {WS}, s{sT0} offen offset:{16*b}")
        a(f"s_add_u32 s{sT0}, s{sT0}, {4*131072}")
    a("s_waitcnt vmcnt(0)")
    a.label("L_ln2_exit")
    a("s_endpgm")

LDS_G = 65536
def gen_g(a, which):
    g1 = which == 1
    tag = f"g{which}"
    nwg = 224 if g1 else 256
    sW, sDT, sNB, sT0, sT1, sCNT, sWoff, sSELA, sSELB, sA, sC0, sC1 = 4,5,6,7,20,21,22,23,24,25,26,27
    SRD_WS, SRD_W, SRD_B, SRD_O = 8, 12, 16, 28
    sKA = 32
    WS = f"s[{SRD_WS}:{SRD_WS+3}]"
    vL, vT0, vT1, vAO, vLW, vO, vB = 1,2,3,4,5,6,7
    R = GemmRegs(8)
    ACC = 176
    wrow = 3584 if g1 else 4096
    nks = 32 if g1 else 28
    a(f"s_cmp_ge_u32 s2, {nwg}")
    a(f"s_cbranch_scc1 L_{tag}_exit")
    a(f"s_load_dwordx4 s[{sKA}:{sKA+3}], s[0:1], {KA_W1 if g1 else KA_W2}")
    a(f"s_load_dwordx2 s[{sKA+4}:{sKA+5}], s[0:1], {KA_WS}")
    a(f"s_load_dwordx2 s[{sKA+6}:{sKA+7}], s[0:1], {KA_OUT}")
    a(f"v_lshrrev_b32 v{vT0}, 6, v0")
    a(f"v_and_b32 v{vL}, 63, v0")
    a(f"v_readfirstlane_b32 s{sW}, v{vT0}")
    if g1:
        a(f"s_mul_hi_u32 s{sDT}, s2, {-(-(1<<32)//14)}")
        a(f"s_mul_i32 s{sT0}, s{sDT}, 14")
        a(f"s_sub_u32 s{sNB}, s2, s{sT0}")
    else:
        a(f"s_and_b32 s{sNB}, s2, 15")
        a(f"s_lshr_b32 s{sDT}, s2, 4")
    a(f"s_mov_b32 s{sSELA}, 0x05040100")
    a(f"s_mov_b32 s{sSELB}, 0x07060302")
    a("s_waitcnt lgkmcnt(0)")
    srd(a, SRD_WS, sKA+4, WS_SIZE)
    srd(a, SRD_W, sKA, 2048*1792*2)
    srd(a, SRD_B, sKA+2, 3584 if g1 else 4096)
    srd(a, SRD_O, sKA+6, 2*MB)
    setup_voff(a, R, vL, vT0, wrow)
    if g1:
        a(f"v_lshlrev_b32 v{vAO}, 4, v{vL}")
    else:
        a(f"v_and_b32 v{vT0}, 51, v{vL}")
        a(f"v_bfe_u32 v{vT1}, v{vL}, 2, 1")
        a(f"v_lshl_add_u32 v{vT0}, v{vT1}, 3, v{vT0}")
        a(f"v_bfe_u32 v{vT1}, v{vL}, 3, 1")
        a(f"v_lshl_add_u32 v{vT0}, v{vT1}, 2, v{vT0}")
        a(f"v_lshlrev_b32 v{vAO}, 4, v{vT0}")
    a(f"s_mul_i32 s{sWoff}, s{sW}, {nks*16*wrow}")
    a(f"s_lshl_b32 s{sT0}, s{sNB}, 8")
    a(f"s_add_u32 s{sWoff}, s{sWoff}, s{sT0}")
    a(f"s_mul_i32 s{sA}, s{sDT}, {4*nks*1024}")
    a(f"s_mul_i32 s{sT0}, s{sW}, {nks*1024}")
    a(f"s_add_u32 s{sA}, s{sA}, s{sT0}")
    a(f"s_add_u32 s{sA}, s{sA}, {WS_HN if g1 else WS_U}")
    acc = lambda mt, t: ('v', ACC + 16*t)
    gemm_loop(a, R, 1, nks, g1, SRD_W, sWoff, wrow, sSELA, sSELB, dict(kind='glb', voff=vAO, srd=SRD_WS, soff=[sA], step=1024), acc, tag, sCNT)
    a(f"v_lshlrev_b32 v{vT0}, 4, v{vL}")
    a(f"s_lshl_b32 s{sT0}, s{sW}, 14")
    a(f"v_add_u32 v{vLW}, s{sT0}, v{vT0}")
    for p in range(4):
        for j in range(4):
            r = ACC + 16*j + 4*p if g1 else ACC + 16*p + 4*j
            a(f"ds_write_b128 v{vLW}, {vr(r,4)} offset:{p*4096+j*1024}")
    a(f"s_lshl_b32 s{sT0}, s{sW}, 12")
    a(f"v_add_u32 v{vLW}, s{sT0}, v{vT0}")
    E = 16
    a("s_waitcnt vmcnt(0) lgkmcnt(0)")
    a(f"v_lshrrev_b32 v{vT1}, 5, v{vL}")
    a(f"v_and_b32 v{vT0}, 31, v{vL}")
    BB = 96
    if g1:
        a(f"v_lshlrev_b32 v{vB}, 5, v{vT1}")
        a(f"s_lshl_b32 s{sT0}, s{sNB}, 8")
        a(f"s_lshl_b32 s{sT1}, s{sW}, 6")
        a(f"s_add_u32 s{sT0}, s{sT0}, s{sT1}")
        a(f"buffer_load_dwordx4 {vr(BB,4)}, v{vB}, s[{SRD_B}:{SRD_B+3}], s{sT0} offen")
        a(f"buffer_load_dwordx4 {vr(BB+4,4)}, v{vB}, s[{SRD_B}:{SRD_B+3}], s{sT0} offen offset:16")
        a(f"v_lshlrev_b32 v{vO}, 10, v{vT1}")
        a(f"v_lshl_add_u32 v{vO}, v{vT0}, 4, v{vO}")
    else:
        a(f"v_lshlrev_b32 v{vB}, 3, v{vT0}")
        a(f"s_lshl_b32 s{sT0}, s{sNB}, 8")
        a(f"s_lshl_b32 s{sT1}, s{sW}, 1")
        a(f"s_add_u32 s{sT0}, s{sT0}, s{sT1}")
        a(f"buffer_load_ushort v{BB+8}, v{vB}, s[{SRD_B}:{SRD_B+3}], s{sT0} offen")
        a(f"v_lshlrev_b32 v{vO}, 12, v{vT0}")
        a(f"v_lshl_add_u32 v{vO}, v{vT1}, 4, v{vO}")
        a(f"s_lshl_b32 s{sC0}, s{sNB}, 17")
        a(f"s_lshl_b32 s{sT1}, s{sW}, 10")
        a(f"s_add_u32 s{sC0}, s{sC0}, s{sT1}")
        a(f"s_lshl_b32 s{sT1}, s{sDT}, 6")
        a(f"s_add_u32 s{sC0}, s{sC0}, s{sT1}")
        a(f"s_add_u32 s{sC1}, s{sC0}, {WS_H}")
        a(f"buffer_load_dwordx4 {vr(BB,4)}, v{vO}, {WS}, s{sC1} offen")
        a(f"buffer_load_dwordx4 {vr(BB+4,4)}, v{vO}, {WS}, s{sC1} offen offset:32")
    a("s_barrier")
    for src in range(4):
        for j in range(4):
            a(f"ds_read_b128 {vr(E+16*src+4*j,4)}, v{vLW} offset:{src*16384+j*1024}")
    a("s_waitcnt lgkmcnt(0)")
    for i in range(0,16,2):
        a(f"v_pk_add_f32 v[{E+i}:{E+i+1}], v[{E+i}:{E+i+1}], v[{E+16+i}:{E+17+i}]")
        a(f"v_pk_add_f32 v[{E+32+i}:{E+33+i}], v[{E+32+i}:{E+33+i}], v[{E+48+i}:{E+49+i}]")
    for i in range(0,16,2):
        a(f"v_pk_add_f32 v[{E+i}:{E+i+1}], v[{E+i}:{E+i+1}], v[{E+32+i}:{E+33+i}]")
    a("s_waitcnt vmcnt(0)")
    G = E + 16
    if g1:
        unpack(a, G, BB, 16)
        c0 = 2*0.7978845608028654*math.log2(math.e); c1 = c0*0.044715
        a(f"s_mov_b32 s{sC0}, 0x{f2u(c0):08x}")
        a(f"v_mov_b32 v{vT0}, 0x{f2u(c1):08x}")
        X = E + 32; Z = E + 48
        for t in range(4):
            for j in range(4):
                fo = 4*j + t
                a(f"v_add_f32 v{X+fo}, v{E+4*t+j}, v{G+fo}")
        for i in range(16): a(f"v_mul_f32 v{Z+i}, v{X+i}, v{X+i}")
        for i in range(16): a(f"v_fma_f32 v{Z+i}, v{Z+i}, v{vT0}, s{sC0}")
        for i in range(16): a(f"v_mul_f32_e64 v{Z+i}, -v{X+i}, v{Z+i}")
        for i in range(16): a(f"v_exp_f32 v{Z+i}, v{Z+i}")
        for i in range(16): a(f"v_add_f32 v{Z+i}, 1.0, v{Z+i}")
        for i in range(16): a(f"v_rcp_f32 v{Z+i}, v{Z+i}")
        for i in range(16): a(f"v_mul_f32 v{X+i}, v{X+i}, v{Z+i}")
        pack(a, E, X, 16)
        a(f"s_mul_i32 s{sT0}, s{sDT}, {112*1024}")
        a(f"s_lshl_b32 s{sT1}, s{sNB}, 13")
        a(f"s_add_u32 s{sT0}, s{sT0}, s{sT1}")
        a(f"s_lshl_b32 s{sT1}, s{sW}, 11")
        a(f"s_add_u32 s{sT0}, s{sT0}, s{sT1}")
        a(f"s_add_u32 s{sT0}, s{sT0}, {WS_U}")
        for u in range(2):
            a(f"buffer_store_dwordx4 {vr(E+4*u,4)}, v{vO}, {WS}, s{sT0} offen offset:{512*u}")
    else:
        pack(a, G, E, 16); unpack(a, E, G, 16)
        a(f"v_lshlrev_b32 v{BB+8}, 16, v{BB+8}")
        for i in range(16): a(f"v_add_f32 v{E+i}, v{E+i}, v{BB+8}")
        pack(a, G, E, 16); unpack(a, E, G, 16)
        unpack(a, G, BB, 16)
        for i in range(16): a(f"v_add_f32 v{E+i}, v{E+i}, v{G+i}")
        pack(a, G+16, E, 16)
        for u in range(2):
            a(f"buffer_store_dwordx4 {vr(G+16+4*u,4)}, v{vO}, s[{SRD_O}:{SRD_O+3}], s{sC0} offen offset:{32*u}")
    a("s_waitcnt vmcnt(0)")
    a.label(f"L_{tag}_exit")
    a("s_endpgm")
```

```python
from common import *
import math, struct


L_W    = 0
L_KX   = 131072
L_MEM  = 147456
L_TQ   = 155648
L_TK   = L_TQ + 2304
L_O    = L_TK + 2304
L_DUM  = L_O + 2304
L_SEL  = L_DUM + 256
LDS_BYTES = L_SEL + 1024
assert LDS_BYTES <= 163840

vIDX, vWL, vMEM0, vMEM1, vMEM2, vMEM3, vKX, vTW, vFQ, vFK, vOW, vOR, vPST, vFST, vM1, vT = range(16)
AF01 = 16
ACC = 24
qA, qB, kA, kB, vA, vB = 24, 28, 32, 36, 40, 44
VXC, VXN = 48, 56
P0, P1, P2, P3 = 64, 80, 96, 112
def AF(i):
    if i < 2: return AF01 + 4*i
    if i < 6: return P0 + 4*(i-2)
    return P1 + 4*(i-6)
SX0, SX1 = P1+8, P1+12
FQ, FK = P2, P3
SM, LA = 24, 28
oA, oB = 32, 36
PM = P2

sW, sH, sSTEP, sPH = 4, 5, 6, 7
SRD_WS, SRD_T, SRD_DBG = 8, 12, 16
sKX, sVX, sKM, sKX2 = 20, 21, 22, 23
sPS = 24
sPL = 26
sFS, sFL, sM0K, sC, sSELA, sSELB, sTO, sT0, sT1, sT2, sSENT, sTHR = 28, 29, 30, 31, 32, 33, 34, 35, 36, 37, 38, 39
sONE = 40
sFL2 = 42
sKA = 44
sST = 60

def placement():
    regs = [('a', 16*i) for i in range(16)] + [('v', 128+16*i) for i in range(8)]
    pl = {}
    lds = [('q',0),('k',0),('v',0),('q',1),('o',1,0,0),('o',1,0,1),('o',1,1,0),('o',1,1,1)]
    allb = [(x,i) for i in range(8) for x in 'qkv'] + [('o',rd,tp,ks) for rd in range(2) for tp in range(2) for ks in range(2)]
    order = [b for b in allb if b not in lds]
    assert len(order) == 24
    for b, r in zip(order, regs): pl[b] = r
    for i, b in enumerate(lds): pl[b] = ('lds', i)
    return pl, order + lds
PL, LOAD_ORDER = placement()
POOLMAP = {('q',0):P0,('k',0):P1,('v',0):P2,('q',1):P3,('o',1,0,0):P0,('o',1,0,1):P3,('o',1,1,0):P2,('o',1,1,1):P1}
def Breg(b, tile):
    p = PL[b]
    if p[0] == 'lds': return ('v', POOLMAP[b] + 8*tile)
    return (p[0], p[1] + 8*tile)
def smf(acc, af, b, tile):
    return f"v_smfmac_f32_16x16x64_bf16 {vr(acc,4)}, {vr(af,4)}, {vr(Breg(b,tile),8)}, v{vIDX}"
def lds_block_loads(b):
    slot = PL[b][1]; dst = POOLMAP[b]
    return [f"ds_read_b128 {vr(dst+4*j,4)}, v{vWL} offset:{slot*4096+1024*j}" for j in range(4)]
def f2u(x): return struct.unpack('<I', struct.pack('<f', x))[0]
WS = f"s[{SRD_WS}:{SRD_WS+3}]"

def gen_recur(a, stamps=False, st_flag="", pub_flag="", nwg=256, d1=2, pk0=0, pk1=9, fk0=2, fk1=9, thr=16.0, nocompute=0, nc_delay=40):
    T = 64
    a(f"s_cmp_ge_u32 s2, {nwg}")
    a("s_cbranch_scc1 L_rec_exit")
    a(f"s_load_dwordx4 s[{sKA}:{sKA+3}], s[0:1], {KA_WQ}")
    a(f"s_load_dwordx4 s[{sKA+4}:{sKA+7}], s[0:1], {KA_WV}")
    a(f"s_load_dwordx4 s[{sKA+8}:{sKA+11}], s[0:1], {KA_DBG}")
    a(f"s_load_dwordx2 s[{sKA+12}:{sKA+13}], s[0:1], {KA_MEM0}")
    a(f"s_getreg_b32 s{sT0}, hwreg(HW_REG_XCC_ID)")
    a(f"v_lshrrev_b32 v1, 6, v0")
    a("s_nop 0")
    a(f"v_readfirstlane_b32 s{sW}, v1")
    a("s_waitcnt lgkmcnt(0)")
    srd(a, SRD_WS, sKA+10, WS_SIZE)
    srd(a, SRD_DBG, sKA+8, 256)
    a(f"s_and_b32 s{sT0}, s{sT0}, 15")
    a(f"s_cmp_lg_u32 s{sT0}, 0")
    a("s_cbranch_scc1 L_rec_exit")
    a(f"v_mov_b32 v2, 1")
    a(f"v_mov_b32 v3, 0")
    a(f"v_mov_b32 v4, {L_DUM}")
    a(f"s_cmp_lg_u32 s{sW}, 0")
    a("s_cbranch_scc1 L_rec_tk")
    a("s_mov_b64 exec, 1")
    a(f"buffer_atomic_add v2, v3, s[{SRD_DBG}:{SRD_DBG+3}], 0 offen sc0")
    a("s_waitcnt vmcnt(0)")
    a("ds_write_b32 v4, v2")
    a("s_waitcnt lgkmcnt(0)")
    a("s_mov_b64 exec, -1")
    a.label("L_rec_tk")
    a("s_barrier")
    a("ds_read_b32 v2, v4")
    a("s_waitcnt lgkmcnt(0)")
    a(f"v_readfirstlane_b32 s{sH}, v2")
    a("s_barrier")
    a(f"s_cmp_ge_u32 s{sH}, 32")
    a("s_cbranch_scc1 L_rec_exit")
    l, n, g, t0, t1, t2, mm, hf = T, T+1, T+2, T+3, T+4, T+5, T+12, T+13
    a(f"v_and_b32 v{l}, 63, v0")
    a(f"v_and_b32 v{n}, 15, v{l}")
    a(f"v_lshrrev_b32 v{g}, 4, v{l}")
    a(f"v_lshrrev_b32 v{t0}, 2, v{n}")
    a(f"v_and_b32 v{t1}, 1, v{n}")
    a(f"v_lshl_add_u32 v{mm}, v{t0}, 1, v{t1}")
    a(f"v_bfe_u32 v{hf}, v{n}, 1, 1")
    a(f"v_mul_u32_u24 v{t0}, 0xAAAA, v{hf}")
    a(f"v_add_u32 v{vIDX}, 0x4444, v{t0}")
    a(f"s_lshl_b32 s{sT0}, s{sW}, 15")
    a(f"v_lshl_add_u32 v{vWL}, v{l}, 4, s{sT0}")
    for q in range(4):
        a(f"s_xor_b32 s{sT0}, s{sW}, {q}")
        a(f"s_lshl_b32 s{sT0}, s{sT0}, 11")
        a(f"s_add_u32 s{sT0}, s{sT0}, {L_MEM}")
        a(f"v_lshl_add_u32 v{vMEM0+q}, v{l}, 4, s{sT0}")
    a(f"s_mov_b32 s{sT0}, {L_KX}")
    a(f"v_lshl_add_u32 v{vKX}, v{l}, 4, s{sT0}")
    a(f"s_lshl_b32 s{sT0}, s{sW}, 6")
    a(f"s_add_u32 s{sT0}, s{sT0}, {L_TQ}")
    a(f"v_mul_u32_u24 v{t0}, 576, v{g}")
    a(f"v_lshl_add_u32 v{t0}, v{n}, 2, v{t0}")
    a(f"v_add_u32 v{vTW}, s{sT0}, v{t0}")
    a(f"v_and_b32 v{t0}, 7, v{n}")
    a(f"v_mul_u32_u24 v{t0}, 288, v{t0}")
    a(f"v_lshl_add_u32 v{t0}, v{g}, 4, v{t0}")
    a(f"v_add_u32 v{vFQ}, {L_TQ}, v{t0}")
    a(f"s_lshl_b32 s{sT0}, s{sW}, 6")
    a(f"s_add_u32 s{sT0}, s{sT0}, {L_O}")
    a(f"v_add_u32 v{vOW}, s{sT0}, v{t0}")
    a(f"v_mul_u32_u24 v{t2}, 288, v{mm}")
    a(f"v_lshl_add_u32 v{t0}, v{g}, 4, v{t2}")
    a(f"v_add_u32 v{vFK}, {L_TK}, v{t0}")
    a(f"v_lshl_add_u32 v{t2}, v{g}, 5, v{t2}")
    a(f"v_lshl_add_u32 v{t2}, v{hf}, 4, v{t2}")
    a(f"v_add_u32 v{vOR}, {L_O}, v{t2}")
    m0off = T+6
    a(f"v_lshlrev_b32 v{m0off}, 10, v{mm}")
    a(f"v_lshl_add_u32 v{m0off}, v{g}, 5, v{m0off}")
    a(f"v_lshl_add_u32 v{m0off}, v{hf}, 4, v{m0off}")
    a(f"v_lshrrev_b32 v{t0}, 2, v{n}")
    a(f"v_lshlrev_b32 v{t0}, 13, v{t0}")
    a(f"v_lshl_add_u32 v{t0}, v{g}, 11, v{t0}")
    a(f"v_and_b32 v{t1}, 3, v{n}")
    a(f"v_lshl_add_u32 v{vPST}, v{t1}, 4, v{t0}")
    a(f"v_lshlrev_b32 v{t0}, 9, v{hf}")
    a(f"v_bfe_u32 v{t1}, v{n}, 2, 1")
    a(f"v_lshl_add_u32 v{t0}, v{t1}, 4, v{t0}")
    a(f"v_lshl_add_u32 v{t0}, v{g}, 2, v{t0}")
    a(f"v_and_b32 v{t1}, 1, v{n}")
    a(f"v_lshl_add_u32 v{vFST}, v{t1}, 1, v{t0}")
    a(f"v_lshlrev_b32 v{t1}, 4, v{t1}")
    a(f"v_mov_b32 v{t2}, 0x3f80")
    a(f"v_lshlrev_b32 v{t2}, v{t1}, v{t2}")
    a(f"v_bfe_u32 v{t0}, v{n}, 1, 2")
    for d in range(4):
        a(f"v_cmp_eq_u32 vcc, {d}, v{t0}")
        a("s_nop 1")
        a(f"v_cndmask_b32 v{96+d}, 0, v{t2}, vcc")
    a(f"v_lshlrev_b32 v{t0}, 4, v{l}")
    a(f"v_add_u32 v{t0}, {L_SEL}, v{t0}")
    a(f"ds_write_b128 v{t0}, v[96:99]")
    vDQ, vDO, vRB = T+7, T+8, T+9
    a(f"v_lshrrev_b32 v{t0}, 2, v{l}")
    a(f"v_and_b32 v{t1}, 3, v{l}")
    a(f"v_lshlrev_b32 v{t1}, 4, v{t1}")
    a(f"v_lshl_add_u32 v{vDQ}, v{t0}, 13, v{t1}")
    a(f"v_lshl_add_u32 v{vDO}, v{t0}, 10, v{t1}")
    a(f"v_lshrrev_b32 v{t0}, 1, v{g}")
    a(f"v_lshlrev_b32 v{t0}, 10, v{t0}")
    a(f"v_and_b32 v{t1}, 1, v{g}")
    a(f"v_lshl_add_u32 v{t0}, v{t1}, 8, v{t0}")
    a(f"v_lshl_add_u32 v{t0}, v{n}, 2, v{t0}")
    a(f"s_lshl_b32 s{sT0}, s{sW}, 15")
    a(f"v_add_u32 v{vRB}, s{sT0}, v{t0}")
    a(f"s_mov_b32 s{sSELA}, 0x05040100")
    a(f"s_mov_b32 s{sSELB}, 0x07060302")
    a(f"s_mov_b32 s{sSENT}, 0xfffefffe")
    a(f"s_mov_b32 s{sONE}, 0x3f803f80")
    a(f"s_mov_b32 s{sONE+1}, 0x3f803f80")
    a(f"s_mov_b32 s{sTHR}, 0x{f2u(thr):08x}")
    a(f"s_mov_b32 s{sC}, 0x{f2u((128 ** -0.5) * math.log2(math.e)):08x}")
    sWB = 43
    a(f"s_lshl_b32 s{sWB}, s{sW}, 15")
    a(f"s_lshl_b32 s{sT0}, s{sH}, 13")
    a(f"s_sub_u32 s{sT0}, s{sT0}, s{sWB}")
    a(f"s_lshl_b32 s{sT1}, s{sW}, 10")
    a(f"s_add_u32 s{sKX}, s{sT0}, s{sT1}")
    a(f"s_add_u32 s{sKX}, s{sKX}, {WS_K}")
    a(f"s_lshl_b32 s{sT1}, s{sW}, 11")
    a(f"s_add_u32 s{sVX}, s{sT0}, s{sT1}")
    a(f"s_add_u32 s{sVX}, s{sVX}, {WS_VT}")
    a(f"s_add_u32 s{sPL}, s{sT0}, s{sT1}")
    a(f"s_add_u32 s{sPL}, s{sPL}, {WS_PART}")
    a(f"s_sub_u32 s{sFL}, s{sT1}, s{sWB}")
    a(f"s_add_u32 s{sFL}, s{sFL}, {WS_FRAG + 8192}")
    a(f"s_lshl_b32 s{sT0}, s{sH}, 12")
    a(f"s_lshl_b32 s{sT1}, s{sW}, 10")
    a(f"s_add_u32 s{sKM}, s{sT0}, s{sT1}")
    a(f"s_sub_u32 s{sKM}, s{sKM}, s{sWB}")
    a(f"s_add_u32 s{sKM}, s{sKM}, {WS_KM}")
    a(f"s_lshl_b32 s{sT0}, s{sH}, 6")
    a(f"s_add_u32 s{sT0}, s{sT0}, s{sWB}")
    for rd in range(2):
        a(f"s_add_u32 s{sPS+rd}, s{sT0}, {WS_PART + rd*16*8192}")
    a(f"s_lshr_b32 s{sT0}, s{sH}, 2")
    a(f"s_lshl_b32 s{sFS}, s{sT0}, 10")
    a(f"s_bfe_u32 s{sT0}, s{sH}, 0x10001")
    a(f"s_lshl_b32 s{sT0}, s{sT0}, 8")
    a(f"s_add_u32 s{sFS}, s{sFS}, s{sT0}")
    a(f"s_and_b32 s{sT0}, s{sH}, 1")
    a(f"s_lshl_b32 s{sT0}, s{sT0}, 5")
    a(f"s_add_u32 s{sFS}, s{sFS}, s{sT0}")
    a(f"s_lshl_b32 s{sT0}, s{sW}, 6")
    a(f"s_add_u32 s{sFS}, s{sFS}, s{sT0}")
    a(f"s_add_u32 s{sFS}, s{sFS}, {WS_FRAG + 8192}")
    a(f"s_lshl_b32 s{sM0K}, s{sW}, 10")
    a(f"s_add_u32 s{sM0K}, s{sM0K}, {L_KX}")
    a(f"s_mov_b32 s{sSTEP}, 0")
    a(f"s_mov_b32 s{sPH}, 1")
    SW = {'q':64,'k':68,'v':72,'o':76}
    srd(a, 64, sKA+0, 4*MB); srd(a, 68, sKA+2, 4*MB); srd(a, 72, sKA+4, 4*MB); srd(a, 76, sKA+6, 4*MB)
    srd(a, SRD_T, sKA+12, 8192)
    a(f"s_lshl_b32 s{sT0}, s{sH}, 8")
    a(f"s_lshl_b32 s{sT1}, s{sW}, 6")
    a(f"s_add_u32 s{sT2}, s{sT0}, s{sT1}")
    sQ = 80
    for q in range(4):
        a(f"s_xor_b32 s{sT0}, s{sW}, {q}")
        a(f"s_lshl_b32 s{sT0}, s{sT0}, 20")
        a(f"s_add_u32 s{sQ+q}, s{sT0}, s{sT2}")
    sOB = 84
    a(f"s_lshl_b32 s{sT0}, s{sH}, 17")
    a(f"s_lshl_b32 s{sT1}, s{sW}, 7")
    a(f"s_add_u32 s{sOB}, s{sT0}, s{sT1}")
    def dma(bi):
        b = LOAD_ORDER[bi]; slot = bi % 8
        for i in range(4):
            a(f"s_add_u32 m0, s{sWB}, {slot*4096 + i*1024}")
            if b[0] == 'o':
                _, rd, tp, ks = b
                a(f"s_add_u32 s{sT0}, s{sOB}, {(64*ks+16*i)*1024 + rd*512 + tp*64}")
                a(f"buffer_load_dwordx4 v{vDO}, s[76:79], s{sT0} offen lds")
            else:
                x, li = b
                a(f"s_add_u32 s{sT0}, s{sQ+li//2}, {(64*(li%2)+16*i)*8192}")
                a(f"buffer_load_dwordx4 v{vDQ}, s[{SW[x]}:{SW[x]+3}], s{sT0} offen lds")
    a(f"s_lshl_b32 s{sT0}, s{sW}, 8")
    a(f"buffer_load_dwordx4 {vr(AF(0),4)}, v{m0off}, s[{SRD_T}:{SRD_T+3}], s{sT0} offen")
    a(f"buffer_load_dwordx4 {vr(AF(1),4)}, v{m0off}, s[{SRD_T}:{SRD_T+3}], s{sT0} offen offset:128")
    for bi in range(8): dma(bi)
    RAW = 96; OUT = 112
    for bi in range(32):
        b = LOAD_ORDER[bi]; slot = bi % 8
        a(f"s_waitcnt vmcnt({4*(min(31, bi+7) - bi)})")
        a(f"v_add_u32 v{vRB+1}, {slot*4096}, v{vRB}")
        a(f"v_add_u32 v{vRB+2}, {slot*4096+2048}, v{vRB}")
        for d in range(8):
            ro = 8*(d%2) + 2*((d%4)//2)
            a(f"ds_read2_b32 {vr(RAW+2*d,2)}, v{vRB+1+d//4} offset0:{ro*16} offset1:{(ro+1)*16}")
        a("s_waitcnt lgkmcnt(0)")
        if bi + 8 < 32: dma(bi+8)
        p = PL[b]
        for d in range(8):
            for tile, sel in ((0,sSELA),(1,sSELB)):
                dst = p[1] + 8*tile + d if p[0] == 'v' else OUT + 8*tile + d
                a(f"v_perm_b32 v{dst}, v{RAW+2*d+1}, v{RAW+2*d}, s{sel}")
        if p[0] == 'a':
            for j in range(16): a(f"v_accvgpr_write_b32 a{p[1]+j}, v{OUT+j}")
        if p[0] == 'lds':
            assert p[1] == slot
            for j in range(4):
                a(f"ds_write_b128 v{vWL}, {vr(OUT+4*j,4)} offset:{slot*4096+1024*j}")
    def kv_prefetch(vx_dst):
        return [f"buffer_load_dwordx4 {vr(vx_dst,4)}, v{vWL}, {WS}, s{sVX} offen",
                f"buffer_load_dwordx4 {vr(vx_dst+4,4)}, v{vWL}, {WS}, s{sVX} offen offset:1024",
                f"s_mov_b32 m0, s{sM0K}",
                f"s_add_u32 s{sKX2}, s{sKX}, 4096",
                f"buffer_load_dwordx4 v{vWL}, {WS}, s{sKX} offen lds",
                f"s_add_u32 m0, s{sM0K}, 4096",
                f"s_xor_b32 s{sM0K}, s{sM0K}, 8192",
                f"buffer_load_dwordx4 v{vWL}, {WS}, s{sKX2} offen lds"]
    for x in kv_prefetch(VXC): a(x)
    a(f"s_add_u32 s{sKX}, s{sKX}, {32*8192}")
    a(f"s_add_u32 s{sVX}, s{sVX}, {32*8192}")
    a("s_waitcnt vmcnt(0) lgkmcnt(0)")
    for b in [('q',0),('k',0),('v',0),('q',1)]:
        for x in lds_block_loads(b): a(x)
    for r in range(ACC, ACC+24, 2): a(f"v_mov_b64 v[{r}:{r+1}], 0")
    a("s_waitcnt lgkmcnt(0)")
    a("s_barrier")
    nst = [0]
    def stamp():
        if stamps:
            a(f"s_memtime s[{sST+2*nst[0]}:{sST+2*nst[0]+1}]")
            nst[0] += 1
    def fstamp():
        if stamps == 2: stamp()
    accs = {'q':(qA,qB),'k':(kA,kB),'v':(vA,vB)}
    def M(x, i, t, *fill):
        a(smf(accs[x][t], AF(i), (x,i), t))
        for f in fill: a(f)
    def mf(d, A, B, c): return f"v_mfma_f32_16x16x32_bf16 {vr(d,4)}, {vr(A,4)}, {vr(B,4)}, {c}"
    def mf16(d, A, B): return f"v_mfma_f32_16x16x16_bf16 {vr(d,4)}, {vr(A,2)}, {vr(B,2)}, {vr(d,4)}"
    def D(ins, *fill):
        a(ins)
        for f in fill: a(f)
    def rdAF(i): return f"ds_read_b128 {vr(AF(i),4)}, v{vMEM0+i//2} offset:{1024*(i%2)}"
    def pack_rows(A, B, d0, d1):
        return [f"v_add_f32 v{A}, v{A}, v{A+2}", f"v_add_f32 v{B}, v{B}, v{B+2}",
                f"v_add_f32 v{A+1}, v{A+1}, v{A+3}", f"v_add_f32 v{B+1}, v{B+1}, v{B+3}",
                f"v_cvt_pk_bf16_f32 v{d0}, v{A}, v{B}", f"v_cvt_pk_bf16_f32 v{d1}, v{A+1}, v{B+1}"]
    def rdKX(dst, X, ks): return f"ds_read_b128 {vr(dst,4)}, v{vKX} offset:{4096*X+1024*ks}"
    a(f"ds_write_b128 v{vMEM0}, {vr(AF(0),4)}")
    a(f"ds_write_b128 v{vMEM0}, {vr(AF(1),4)} offset:1024")
    a(".p2align 6")
    a.label("L_rec_loop")
    stamp()
    if nocompute:
        a("s_waitcnt lgkmcnt(0)")
        a("s_barrier")
        a(f"s_cmp_eq_u32 s{sSTEP}, 63")
        a("s_cbranch_scc1 L_rec_done")
        for x in ([f"s_mov_b32 m0, {L_DUM}", f"s_add_u32 s{sFL2}, s{sFL}, 1024",
            f"buffer_load_dword v{vWL}, {WS}, s{sFL} offen sc1 lds",
            f"buffer_load_dword v{vWL}, {WS}, s{sFL2} offen sc1 lds"] if nocompute>1 else []): a(x)
        for _ in range(nc_delay):
            a(f"v_mov_b32 v{vM1}, 0"); a("s_nop 3")
        a(f"v_bfi_b32 v28, 1, s{sPH}, v28")
        a(f"v_bfi_b32 v24, 1, s{sPH}, v24")
        stamp()
        a(f"buffer_store_dwordx4 v[28:31], v{vPST}, {WS}, s{sPS} offen {st_flag}")
        a(f"buffer_store_dwordx4 v[24:27], v{vPST}, {WS}, s{sPS+1} offen {st_flag}")
        a("s_branch L_rec_comm")
    M('q',0,0); M('q',0,1); M('k',0,0)
    M('k',0,1, "s_waitcnt lgkmcnt(0)", "s_barrier")
    M('v',0,0, rdAF(2)); M('v',0,1, rdAF(3)); M('q',1,0, rdAF(4)); M('q',1,1, rdAF(5)); M('k',1,0, rdAF(6)); M('k',1,1, rdAF(7))
    M('v',1,0); M('v',1,1, "s_waitcnt lgkmcnt(4)")
    kvp = kv_prefetch(VXN)
    adv = [f"s_cmp_lt_u32 s{sSTEP}, 62", f"s_cselect_b32 s{sT0}, {32*8192}, 0", f"s_add_u32 s{sKX}, s{sKX}, s{sT0}", f"s_add_u32 s{sVX}, s{sVX}, s{sT0}"]
    warm = [f"s_mov_b32 m0, {L_DUM}", f"s_add_u32 s{sFL2}, s{sFL}, 1024",
            f"buffer_load_dword v{vWL}, {WS}, s{sFL} offen sc1 lds",
            f"buffer_load_dword v{vWL}, {WS}, s{sFL2} offen sc1 lds"]
    M('q',2,0, kvp[0]); M('q',2,1, kvp[1])
    M('q',3,0, kvp[2], kvp[3]); M('q',3,1, kvp[4], "s_waitcnt lgkmcnt(0)")
    M('q',4,0, kvp[5], kvp[6]); M('q',4,1, kvp[7])
    M('q',5,0, warm[0], warm[1]); M('q',5,1, warm[2])
    M('q',6,0, warm[3]); M('q',6,1, adv[0], adv[1])
    M('q',7,0, adv[2], adv[3]); M('q',7,1)
    stamp()
    M('k',2,0, rdKX(FK,0,0)); M('k',2,1, rdKX(FK+4,0,1)); M('k',3,0, rdKX(FK+8,0,2), rdKX(FK+12,0,3))
    for x in pack_rows(qA,qB, vM1, vT): a(x)
    a(f"ds_write2_b32 v{vTW}, v{vM1}, v{vT} offset0:0 offset1:72")
    M('k',3,1, rdKX(qA,1,0)); M('k',4,0, rdKX(qB,1,1)); M('k',4,1)
    M('k',5,0, "s_waitcnt lgkmcnt(2)", "s_barrier")
    rdFQ = [f"ds_read_b128 {vr(FQ+4*ks,4)}, v{vFQ} offset:{64*ks}" for ks in range(4)]
    M('k',5,1, rdFQ[0], rdFQ[1]); M('k',6,0, rdFQ[2], rdFQ[3]); M('k',6,1); M('k',7,0); M('k',7,1)
    stamp()
    M('v',2,0, "s_waitcnt lgkmcnt(0)")
    fstamp()
    kp = pack_rows(kA,kB, kB+2, kB+3)
    D(mf(SX0, FK, FQ, "0"), rdKX(FK,1,2))
    D(mf(SX0, FK+4, FQ+4, vr(SX0,4)), rdKX(FK+4,1,3), kp[0], kp[1])
    D(mf(SX0, FK+8, FQ+8, vr(SX0,4)), kp[2], kp[3])
    D(mf(SX0, FK+12, FQ+12, vr(SX0,4)), kp[4], kp[5])
    fstamp()
    a(f"ds_write_b32 v{vTW}, v{kB+2} offset:2304")
    a(f"ds_write_b32 v{vTW}, v{kB+3} offset:{2304+288}")
    D(mf(SX1, qA, FQ, "0"), f"buffer_store_dwordx2 {vr(kB+2,2)}, v{vWL}, {WS}, s{sKM} offen {pub_flag}")
    fstamp()
    D(mf(SX1, qB, FQ+4, vr(SX1,4)), "s_waitcnt lgkmcnt(2)")
    fstamp()
    D(mf(SX1, FK, FQ+8, vr(SX1,4)), f"v_max3_f32 v{vM1}, v{SX0}, v{SX0+1}, v{SX0+2}")
    D(mf(SX1, FK+4, FQ+12, vr(SX1,4)), "s_waitcnt lgkmcnt(0)", "s_barrier")
    fstamp()
    rdFK = [f"ds_read_b128 {vr(FK+4*ks,4)}, v{vFK} offset:{64*ks}" for ks in range(4)]
    M('v',2,1, rdFK[0], rdFK[1]); M('v',3,0, rdFK[2], rdFK[3]);
    M('v',3,1, f"v_max3_f32 v{vT}, v{SX0+3}, v{SX1}, v{SX1+1}")
    a(f"v_max3_f32 v{vM1}, v{vM1}, v{SX1+2}, v{SX1+3}")
    a(f"v_max_f32 v{vM1}, v{vM1}, v{vT}")
    a(f"v_mov_b32 v{vT}, v{vM1}")
    M('v',4,0, "s_nop 0", f"v_permlane16_swap_b32 v{vM1}, v{vT}")
    a(f"v_max_f32 v{vM1}, v{vM1}, v{vT}")
    a(f"v_mov_b32 v{vT}, v{vM1}")
    fstamp()
    a("s_waitcnt lgkmcnt(0)")
    fstamp()
    D(mf(SM, FK, FQ, "0"), f"v_permlane32_swap_b32 v{vM1}, v{vT}", f"v_max_f32 v{vM1}, v{vM1}, v{vT}")
    xv = [SX0+i for i in range(4)] + [SX1+i for i in range(4)]
    fm = [f"v_fma_f32 v{r}, v{r}, s{sC}, -v{vM1}" for r in xv]
    ex = [f"v_exp_f32 v{r}, v{r}" for r in xv]
    D(mf(SM, FK+4, FQ+4, vr(SM,4)), f"v_mul_f32 v{vM1}, s{sC}, v{vM1}", fm[0])
    D(mf(SM, FK+8, FQ+8, vr(SM,4)), fm[1], fm[2])
    D(mf(SM, FK+12, FQ+12, vr(SM,4)), fm[3], fm[4])
    stamp()
    wo11 = lds_block_loads(('o',1,0,1))
    M('v',4,1, wo11[0], fm[5]); a(fm[6]); a(fm[7])
    M('v',5,0, wo11[1], ex[0]); a(ex[1])
    M('v',5,1, wo11[2], ex[2]); a(ex[3])
    M('v',6,0, wo11[3], ex[4]); a(ex[5])
    M('v',6,1, ex[6]); a(ex[7])
    M('v',7,0, f"v_fma_f32 v{SM+2}, v{SM}, s{sC}, -v{vM1}")
    a(f"v_fma_f32 v{SM+3}, v{SM+1}, s{sC}, -v{vM1}")
    a(f"v_cvt_pk_bf16_f32 v{SX0}, v{SX0}, v{SX0+1}")
    a(f"v_cvt_pk_bf16_f32 v{SX0+1}, v{SX0+2}, v{SX0+3}")
    M('v',7,1, f"v_cvt_pk_bf16_f32 v{SX0+2}, v{SX1}, v{SX1+1}")
    a(f"v_cvt_pk_bf16_f32 v{SX0+3}, v{SX1+2}, v{SX1+3}")
    a(f"v_max_f32 v{vT}, v{SM+2}, v{SM+3}")
    a(f"v_cmp_lt_f32 vcc, s{sTHR}, v{vT}")
    wo10 = lds_block_loads(('o',1,0,0))
    D(mf(oA, VXC, SX0, "0"), wo10[0], f"v_mov_b32 v{SX1}, s{sONE}", f"v_mov_b32 v{SX1+1}, s{sONE}")
    D(mf(oB, VXC+4, SX0, "0"), wo10[1], f"v_mov_b32 v{SX1+2}, s{sONE}", f"v_mov_b32 v{SX1+3}, s{sONE}")
    a(f"v_add_f32 v{vA}, v{vA}, v{vA+2}")
    a(f"v_add_f32 v{vA+1}, v{vA+1}, v{vA+3}")
    D(mf(LA, SX1, SX0, "0"), wo10[2], f"v_add_f32 v{vB}, v{vB}, v{vB+2}", f"v_add_f32 v{vB+1}, v{vB+1}, v{vB+3}")
    a("s_cbranch_vccnz L_rec_slow")
    a.label("L_rec_back")
    a(f"v_exp_f32 v{SM+2}, v{SM+2}")
    a(f"v_exp_f32 v{SM+3}, v{SM+3}")
    a(f"v_cvt_pk_bf16_f32 v{vA+2}, v{vA}, v{vA+1}")
    a(f"v_cvt_pk_bf16_f32 v{vA+3}, v{vB}, v{vB+1}")
    a(f"v_cvt_pk_bf16_f32 v{PM}, v{SM+2}, v{SM+3}")
    a(f"v_mov_b64 v[{PM+2}:{PM+3}], 0")
    a(f"v_mov_b32 v{PM+1}, 0")
    a(f"v_cvt_pk_bf16_f32 v{PM+3}, v{SM+2}, v{SM+3}")
    a(wo10[3])
    D(mf16(LA, SX1, PM), f"buffer_store_dwordx2 {vr(vA+2,2)}, v{vWL}, {WS}, s{sKM} offen offset:8 {pub_flag}")
    D(mf16(oA, vA+2, PM), f"s_cmp_eq_u32 s{sSTEP}, 63")
    D(mf16(oB, vA+2, PM+2), "s_waitcnt vmcnt(8)")
    a("s_cbranch_scc1 L_rec_done")
    a(f"v_mov_b64 v[48:49], 0")
    a(f"v_rcp_f32 v{LA}, v{LA}")
    a(f"v_mov_b64 v[50:51], 0")
    a(f"v_mov_b64 v[52:53], 0")
    a(f"v_mov_b32 v{LA+1}, v{LA}")
    a(f"v_mov_b64 v[54:55], 0")
    a(f"v_pk_mul_f32 v[{oA}:{oA+1}], v[{oA}:{oA+1}], v[{LA}:{LA+1}]")
    a(f"v_pk_mul_f32 v[{oA+2}:{oA+3}], v[{oA+2}:{oA+3}], v[{LA}:{LA+1}]")
    a(f"v_pk_mul_f32 v[{oB}:{oB+1}], v[{oB}:{oB+1}], v[{LA}:{LA+1}]")
    a(f"v_pk_mul_f32 v[{oB+2}:{oB+3}], v[{oB+2}:{oB+3}], v[{LA}:{LA+1}]")
    for i in range(4):
        a(f"v_cvt_pk_bf16_f32 v{AF01+i}, v{oA+i}, v{oB+i}")
    a(f"ds_write_b128 v{vOW}, {vr(AF01,4)}")
    stamp()
    for r in range(24, 48, 2): a(f"v_mov_b64 v[{r}:{r+1}], 0")
    a("s_waitcnt lgkmcnt(0)")
    a("s_barrier")
    a(f"ds_read_b128 {vr(AF(0),4)}, v{vOR}")
    a(f"ds_read_b128 {vr(AF(1),4)}, v{vOR} offset:128")
    for x in lds_block_loads(('o',1,1,0)): a(x)
    for x in lds_block_loads(('o',1,1,1)): a(x)
    a("s_waitcnt lgkmcnt(9)")
    stamp()
    def WA(rd, tp, t): return 24 + 16*rd + 8*tp + 4*t
    def W(rd, tp, ks, t, *fill):
        a(smf(WA(rd,tp,t), AF(ks), ('o',rd,tp,ks), t))
        for f in fill: a(f)
    def wpack(rd, tp):
        A, B = WA(rd,tp,0), WA(rd,tp,1)
        G = OUTQ[rd]
        return [f"v_add_f32 v{A}, v{A}, v{A+2}", f"v_add_f32 v{B}, v{B}, v{B+2}",
                f"v_add_f32 v{A+1}, v{A+1}, v{A+3}", f"v_add_f32 v{B+1}, v{B+1}, v{B+3}",
                f"v_cvt_pk_bf16_f32 v{G+tp}, v{A}, v{B}", f"v_cvt_pk_bf16_f32 v{G+2+tp}, v{A+1}, v{B+1}"]
    OUTQ = {0: P0, 1: 24}
    W(0,0,0,0); W(0,0,0,1, "s_waitcnt lgkmcnt(8)"); W(0,0,1,0); W(0,0,1,1)
    W(0,1,0,0); W(0,1,0,1)
    A0, B0, A1, B1 = WA(0,0,0), WA(0,0,1), WA(0,1,0), WA(0,1,1)
    W(0,1,1,0, f"v_add_f32 v{A0}, v{A0}, v{A0+2}")
    W(0,1,1,1, f"v_add_f32 v{A0+1}, v{A0+1}, v{A0+3}")
    W(1,0,0,0, f"v_add_f32 v{A0+2}, v{B0}, v{B0+2}")
    W(1,0,0,1, f"v_add_f32 v{A0+3}, v{B0+1}, v{B0+3}")
    a(f"v_cvt_pk_bf16_f32 v{B0}, v{A0}, v{A0+2}")
    a(f"v_cvt_pk_bf16_f32 v{B0+2}, v{A0+1}, v{A0+3}")
    W(1,0,1,0, f"v_add_f32 v{A1}, v{A1}, v{A1+2}")
    a(f"v_add_f32 v{B1}, v{B1}, v{B1+2}")
    a(f"v_add_f32 v{A1+1}, v{A1+1}, v{A1+3}")
    W(1,0,1,1, "s_waitcnt lgkmcnt(0)", f"v_add_f32 v{B1+1}, v{B1+1}, v{B1+3}")
    a(f"v_cvt_pk_bf16_f32 v{B0+1}, v{A1}, v{B1}")
    a(f"v_cvt_pk_bf16_f32 v{B0+3}, v{A1+1}, v{B1+1}")
    a(f"v_bfi_b32 v{B0}, 1, s{sPH}, v{B0}")
    W(1,1,0,0, f"buffer_store_dwordx4 {vr(B0,4)}, v{vPST}, {WS}, s{sPS} offen {st_flag}")
    C0, E0, C1, E1 = WA(1,0,0), WA(1,0,1), WA(1,1,0), WA(1,1,1)
    G = A0
    W(1,1,0,1, f"v_add_f32 v{C0}, v{C0}, v{C0+2}")
    W(1,1,1,0, f"v_add_f32 v{E0}, v{E0}, v{E0+2}")
    W(1,1,1,1, f"v_add_f32 v{C0+1}, v{C0+1}, v{C0+3}")
    a(f"v_add_f32 v{E0+1}, v{E0+1}, v{E0+3}")
    a(f"v_cvt_pk_bf16_f32 v{G}, v{C0}, v{E0}")
    a(f"v_cvt_pk_bf16_f32 v{G+2}, v{C0+1}, v{E0+1}")
    a(f"v_bfi_b32 v{G}, 1, s{sPH}, v{G}")
    a(f"v_add_f32 v{C1}, v{C1}, v{C1+2}")
    a(f"v_add_f32 v{C1+1}, v{C1+1}, v{C1+3}")
    a("s_nop 0")
    a(f"v_add_f32 v{E1}, v{E1}, v{E1+2}")
    a(f"v_add_f32 v{E1+1}, v{E1+1}, v{E1+3}")
    a(f"v_cvt_pk_bf16_f32 v{G+1}, v{C1}, v{E1}")
    a(f"v_cvt_pk_bf16_f32 v{G+3}, v{C1+1}, v{E1+1}")
    a(f"buffer_store_dwordx4 {vr(G,4)}, v{vPST}, {WS}, s{sPS+1} offen {st_flag}")
    a.label("L_rec_comm")
    stamp()
    SEL = 40; RA = 32; RB = 16; RD = 44; DUM = 28
    def KA(n):
        for _ in range(n):
            a(f"v_mov_b32 v{vM1}, 0")
            a("s_nop 3")
    a(f"v_subrev_u32 v{vT}, s{sWB}, v{vWL}")
    a(f"v_add_u32 v{vT}, {L_SEL}, v{vT}")
    a(f"ds_read_b128 {vr(SEL,4)}, v{vT}")
    hk = []
    for b in [('q',0),('k',0),('v',0),('q',1)]: hk += lds_block_loads(b)
    mv = [f"v_mov_b64 v[{VXC+j}:{VXC+j+1}], v[{VXN+j}:{VXN+j+1}]" for j in range(0,8,2)]
    a("s_waitcnt vmcnt(2)")
    a(f"s_mov_b32 s{sTO}, 100000")
    for i in range(4):
        for x in hk[4*i:4*i+4][:d1]: a(x)
        a(mv[i])
    for i in range(4):
        for x in hk[4*i:4*i+4][d1:]: a(x)
        a(f"v_mov_b32 v{vM1}, 0")
    a(f"v_xor_b32 v{vKX}, 8192, v{vKX}")
    KA(pk0)
    R = RA
    fstamp()
    a.label("L_rec_pp")
    a(f"buffer_load_dwordx4 {vr(R,4)}, v{vWL}, {WS}, s{sPL} offen sc1")
    a(f"buffer_load_dwordx4 {vr(R+4,4)}, v{vWL}, {WS}, s{sPL} offen offset:1024 sc1")
    a(f"s_sub_u32 s{sTO}, s{sTO}, 1")
    a(f"s_cbranch_scc1 L_rec_fail")
    KA(pk1)
    a(f"v_mov_b32 v{vM1}, 0")
    a("s_waitcnt vmcnt(0) lgkmcnt(0)")
    a(f"v_bitop3_b32 v{vT}, v{R}, v{R+4}, s{sPH} bitop3:0x7e")
    a(f"v_and_b32 v{vT}, 1, v{vT}")
    a(f"v_cmp_eq_u32 vcc, 1, v{vT}")
    a("s_mov_b64 exec, -1")
    a(mf(RD, R, SEL, "0"))
    a(mf(RD, R+4, SEL, vr(RD,4)))
    a(f"s_cbranch_vccz L_rec_ppd")
    a("s_mov_b64 exec, vcc")
    a(f"s_branch L_rec_pp")
    a.label("L_rec_ppd")
    stamp()
    a(f"s_mov_b32 s{sT1}, s{sTO}")
    a(f"s_mov_b32 s{sTO}, 100000")
    a(f"s_add_u32 s{sSTEP}, s{sSTEP}, 1")
    a(f"s_xor_b32 s{sPH}, s{sPH}, 1")
    a(f"s_add_u32 s{sKM}, s{sKM}, {32*4096}")
    a("s_nop 1")
    a(f"v_permlane32_swap_b32 v{RD}, v{RD+2}")
    a(f"v_permlane32_swap_b32 v{RD+1}, v{RD+3}")
    a(f"v_add_f32 v{RD}, v{RD}, v{RD+2}")
    a(f"v_add_f32 v{RD+1}, v{RD+1}, v{RD+3}")
    a("s_nop 1")
    a(f"v_permlane16_swap_b32 v{RD}, v{RD+1}")
    a(f"v_add_f32 v{RD}, v{RD}, v{RD+1}")
    a(f"v_cvt_pk_bf16_f32 v{vT}, v{RD}, v{RD}")
    a(f"v_min_u32 v{vT}, s{sSENT}, v{vT}")
    a(f"buffer_store_short v{vT}, v{vFST}, {WS}, s{sFS} offen {st_flag}")
    stamp()
    a(f"s_add_u32 s{sFS}, s{sFS}, 8192")
    for r in range(24,48,2): a(f"v_mov_b64 v[{r}:{r+1}], 0")
    KA(fk0)
    R = AF01
    fstamp()
    a.label("L_rec_fp")
    a(f"buffer_load_dwordx4 {vr(R,4)}, v{vWL}, {WS}, s{sFL} offen sc1")
    a(f"buffer_load_dwordx4 {vr(R+4,4)}, v{vWL}, {WS}, s{sFL} offen offset:1024 sc1")
    a(f"s_sub_u32 s{sTO}, s{sTO}, 1")
    a(f"s_cbranch_scc1 L_rec_fail")
    KA(fk1)
    a(f"v_mov_b32 v{vM1}, 0")
    a("s_waitcnt vmcnt(0)")
    a(f"v_max3_u32 v{vM1}, v{R}, v{R+1}, v{R+2}")
    a(f"v_max3_u32 v{vT}, v{R+3}, v{R+4}, v{R+5}")
    a(f"v_max3_u32 v{vM1}, v{vM1}, v{R+6}, v{R+7}")
    a(f"v_max_u32 v{vM1}, v{vM1}, v{vT}")
    a(f"v_cmp_eq_u32 vcc, -1, v{vM1}")
    a(f"ds_write_b128 v{vMEM0}, {vr(R,4)}")
    a(f"ds_write_b128 v{vMEM0}, {vr(R+4,4)} offset:1024")
    a("s_mov_b64 exec, -1")
    a(f"s_cbranch_vccz L_rec_fpa")
    a("s_mov_b64 exec, vcc")
    a(f"s_branch L_rec_fp")
    a.label("L_rec_fpa")
    stamp()
    a(f"s_add_u32 s{sFL}, s{sFL}, 8192")
    if stamps:
        a(f"s_cmp_lg_u32 s{sSTEP}, 40")
        a("s_cbranch_scc1 L_rec_loop")
        a("s_waitcnt lgkmcnt(0)")
        a(f"s_lshl_b32 s{sT0}, s{sH}, 2")
        a(f"s_add_u32 s{sT0}, s{sT0}, s{sW}")
        a(f"s_lshl_b32 s{sT0}, s{sT0}, 7")
        a(f"s_add_u32 s{sT0}, s{sT0}, {WS_XN}")
        a(f"v_mov_b32 v{vM1}, 0")
        for i in range(nst[0]):
            a(f"v_mov_b32 v{vT}, s{sST+2*i}")
            a(f"buffer_store_dword v{vT}, v{vM1}, {WS}, s{sT0} offen offset:{4*i}")
            a("s_nop 1")
        a(f"v_mov_b32 v{vT}, s{sTO}")
        a(f"buffer_store_dword v{vT}, v{vM1}, {WS}, s{sT0} offen offset:124")
        a("s_nop 1")
        a(f"v_mov_b32 v{vT}, s{sT1}")
        a(f"buffer_store_dword v{vT}, v{vM1}, {WS}, s{sT0} offen offset:120")
    a("s_branch L_rec_loop")
    a.label("L_rec_slow")
    a(f"v_max_f32 v{vT}, 0, v{vT}")
    a(f"v_mov_b32 v{SM}, v{vT}")
    a("s_nop 1")
    a(f"v_permlane16_swap_b32 v{vT}, v{SM}")
    a(f"v_max_f32 v{vT}, v{vT}, v{SM}")
    a(f"v_mov_b32 v{SM}, v{vT}")
    a("s_nop 1")
    a(f"v_permlane32_swap_b32 v{vT}, v{SM}")
    a(f"v_max_f32 v{vT}, v{vT}, v{SM}")
    a(f"v_sub_f32 v{SM+2}, v{SM+2}, v{vT}")
    a(f"v_sub_f32 v{SM+3}, v{SM+3}, v{vT}")
    a(f"v_sub_f32 v{vT}, 0, v{vT}")
    a(f"v_exp_f32 v{vT}, v{vT}")
    a("s_nop 7")
    for r in list(range(oA,oA+4))+list(range(oB,oB+4))+list(range(LA,LA+4)):
        a(f"v_mul_f32 v{r}, v{r}, v{vT}")
    a("s_branch L_rec_back")
    a.label("L_rec_fail")
    a("s_mov_b64 exec, -1")
    a(f"v_mov_b32 v{vM1}, 0")
    a(f"v_mov_b32 v{vT}, 0xdead")
    a(f"buffer_store_dword v{vT}, v{vM1}, s[{SRD_DBG}:{SRD_DBG+3}], 0 offen offset:64")
    a.label("L_rec_done")
    a("s_waitcnt vmcnt(0)")
    a.label("L_rec_exit")
    a("s_endpgm")

def standalone(path, **kw):
    a = Asm()
    gen_recur(a, **kw)
    txt = f"; @launch kernel=recur_kernel grid=(256,1,1) block=(256,1,1) lds={LDS_BYTES}\n"
    txt += '.amdgcn_target "amdgcn-amd-amdhsa--gfx950"\n.text\n' + kernel_header("recur_kernel") + a.text()
    txt += '.section .rodata,"a"\n' + kernel_desc("recur_kernel", 512, 102, 256)
    open(path,"w").write(txt)

if __name__ == "__main__":
    standalone("out_r4_nc.s", stamps=2, nocompute=2)
    standalone("out_r4_nc_sc0.s", stamps=2, nocompute=2, st_flag="sc0")
    standalone("out_r4_nc_nt.s", stamps=2, nocompute=2, st_flag="nt")
    standalone("out_r4_nc_d.s", stamps=2, nocompute=2, pk0=10, fk0=10)
```

```python
import sys
from common import *
import k_qkv, recur4, k_aw, k_tail
HDR = open('sequential_preLN__memory_aug_recurrent_mem_tr__mixer_token_mlp__prompt.s.ref').read().split("; Override launch")[0]
def build(kernels, path):
    txt = HDR
    for k in kernels: txt += f"; @launch kernel={k[0]} grid=({k[2]},1,1) block=({k[3]},1,1) lds={k[4]}\n"
    txt += '.amdgcn_target "amdgcn-amd-amdhsa--gfx950"\n.text\n'
    for k in kernels:
        a = Asm(); a.uid = 1000*kernels.index(k); k[1](a)
        txt += kernel_header(k[0]) + a.text()
    txt += '.section .rodata,"a"\n'
    for k in kernels: txt += kernel_desc(k[0], k[5], 102, k[6])
    open(path,'w').write(txt)
KS = {
 'qkv': ("qkv_kernel", k_qkv.gen_qkv, 256, 256, k_qkv.LDS_QKV, 512, 256),
 'recur': ("recur_kernel", recur4.gen_recur, 256, 256, recur4.LDS_BYTES, 512, 256),
 'aw': ("aw_kernel", k_aw.gen_aw, 256, 256, k_aw.LDS_AW, 512, 256),
 'ln2': ("ln2_kernel", k_tail.gen_ln2, 256, 64, k_tail.LDS_LN2, 256, 256),
 'g1': ("g1_kernel", lambda a: k_tail.gen_g(a,1), 224, 256, k_tail.LDS_G, 256, 256),
 'g2': ("g2_kernel", lambda a: k_tail.gen_g(a,2), 256, 256, k_tail.LDS_G, 256, 256),
}
if __name__ == "__main__":
    build([KS[n] for n in sys.argv[2:]], sys.argv[1])
```

```python
MB = 1 << 20
WS_Q    = 0 * MB
WS_K    = 16 * MB
WS_VT   = 32 * MB
WS_KM   = 96 * MB + 131072
WS_VMT  = 52 * MB
WS_PART = 56 * MB
WS_FRAG = 57 * MB
WS_O    = 64 * MB
WS_P2   = 80 * MB
WS_H    = 112 * MB
WS_HN   = 114 * MB
WS_U    = 118 * MB
WS_XN   = 122 * MB
WS_SIZE = 256 * MB

KA_X, KA_MEM0, KA_WQ, KA_WK, KA_WV, KA_WO, KA_SEG, KA_BX, KA_W1, KA_B1, KA_W2, KA_B2, KA_OUT, KA_DBG, KA_WS = [8*i for i in range(15)]

class Asm:
    def __init__(self):
        self.lines = []
        self.uid = 0
    def __call__(self, s):
        for ln in s.strip("\n").split("\n"):
            self.lines.append("    " + ln.strip() if not ln.strip().endswith(":") else ln.strip())
    def label(self, name):
        self.lines.append(name + ":")
    def newlabel(self, base):
        self.uid += 1
        return f"L_{base}_{self.uid}"
    def comment(self, s):
        self.lines.append("    ; " + s)
    def text(self):
        return "\n".join(self.lines) + "\n"

def vr(base, n=1):
    if isinstance(base, int): base = ('v', base)
    k, i = base
    return f"{k}{i}" if n == 1 else f"{k}[{i}:{i+n-1}]"

def srd(a, sbase, ptr_lo, nbytes):
    a(f"s_mov_b32 s{sbase}, s{ptr_lo}")
    a(f"s_and_b32 s{sbase+1}, s{ptr_lo+1}, 0xffff")
    a(f"s_mov_b32 s{sbase+2}, {nbytes}")
    a(f"s_mov_b32 s{sbase+3}, 0x00020000")

def kernel_header(name):
    return f""".globl {name}
.p2align 8
.type {name},@function
{name}:
"""
def kernel_desc(name, vgpr, sgpr, accum):
    return f""".p2align 6
.amdhsa_kernel {name}
  .amdhsa_next_free_vgpr {vgpr}
  .amdhsa_next_free_sgpr {sgpr}
  .amdhsa_accum_offset {accum}
  .amdhsa_group_segment_fixed_size 0
  .amdhsa_kernarg_size 120
  .amdhsa_user_sgpr_count 2
  .amdhsa_user_sgpr_kernarg_segment_ptr 1
  .amdhsa_system_sgpr_workgroup_id_x 1
.end_amdhsa_kernel
"""
def interleave(main, fill, start=0, per=1):
    out = []; fi = 0
    for i, m in enumerate(main):
        out.append(m)
        if i >= start:
            for _ in range(per):
                if fi < len(fill):
                    out.append(fill[fi]); fi += 1
    out.extend(fill[fi:])
    return out

WS_FLG = 58 * MB
F_QKV = WS_FLG
F_M   = WS_FLG + 32768
F_P   = WS_FLG + 36864
F_H   = WS_FLG + 45056
FLG_BYTES = 131072
D_TOTAL, D_OVF, D_GATE, D_ERR = 32, 36, 40, 64
sWAVE = 100
sROLE = 101

POLLMAX = [400000]
def poll_flags(a, name, load, nregs, vreg, sTO, fail, sleep=8, lanes_mask=None):
    lab = a.newlabel(name); done = a.newlabel(name+"d")
    a(f"s_mov_b32 s{sTO}, {POLLMAX[0]}")
    a.label(lab)
    a(load)
    a("s_waitcnt vmcnt(0)")
    for j in range(1, nregs): a(f"v_min_u32 v{vreg}, v{vreg}, v{vreg+j}")
    a(f"v_cmp_eq_u32 vcc, 0, v{vreg}")
    a(f"s_cbranch_vccz {done}")
    a(f"s_sub_u32 s{sTO}, s{sTO}, 1")
    a(f"s_cbranch_scc1 {fail}")
    a(f"s_sleep {sleep}")
    a(f"s_branch {lab}")
    a.label(done)

def restore_tid(a):
    a("v_mbcnt_lo_u32_b32 v0, -1, 0")
    a("v_mbcnt_hi_u32_b32 v0, -1, v0")
    a(f"s_lshl_b32 s3, s{sWAVE}, 6")
    a("v_add_u32 v0, s3, v0")

TRACE = [False]
WS_TR = 124 * MB
def trace(a, srd_ws, slot_sgpr_expr, idx, v0, v1, s0, op="s_memrealtime"):
    if not TRACE[0]: return
    a(f"{op} s[{s0}:{s0+1}]")
    a(f"s_lshl_b32 s{s0+2}, s98, 2")
    a(f"s_add_u32 s{s0+2}, s{s0+2}, s{sWAVE}")
    a(f"s_lshl_b32 s{s0+2}, s{s0+2}, 8")
    a(f"s_add_u32 s{s0+2}, s{s0+2}, {WS_TR}")
    a("s_waitcnt lgkmcnt(0)")
    a(f"v_mov_b32 v{v0}, s{s0}")
    if isinstance(idx, int): a(f"v_mov_b32 v{v1}, {4*idx}")
    else: a(f"v_lshlrev_b32 v{v1}, 2, {idx}")
    a(f"buffer_store_dword v{v0}, v{v1}, s[{srd_ws}:{srd_ws+3}], s{s0+2} offen")

def poll_ge(a, name, load, vreg, sNEED, sTO, fail, sleep=4):
    lab = a.newlabel(name); done = a.newlabel(name+"d")
    a(f"s_mov_b32 s{sTO}, {POLLMAX[0]}")
    a.label(lab)
    a(load)
    a("s_waitcnt vmcnt(0)")
    a(f"v_cmp_gt_u32 vcc, s{sNEED}, v{vreg}")
    a(f"s_cbranch_vccz {done}")
    a(f"s_sub_u32 s{sTO}, s{sTO}, 1")
    a(f"s_cbranch_scc1 {fail}")
    a(f"s_sleep {sleep}")
    a(f"s_branch {lab}")
    a.label(done)
```

```python
from common import *
class GemmRegs:
    def __init__(self, base):
        self.VOFF = base
        self.RAW = base + 8
        self.BF = self.RAW + 64
        self.AFR = self.BF + 32
        self.end = self.AFR + 64

def gemm_loop(a, R, MT, nks, swapped, srdW, sWoff, wrow_bytes, sSELA, sSELB, act, acc, tag, sCNT, ld_flag=""):
    assert nks % 4 == 0
    glb = act['kind'] == 'glb'
    NL = 4 + (MT if glb else 0)
    def wloads(st):
        L = [f"buffer_load_dwordx4 {vr(R.RAW+16*st+4*i,4)}, v{R.VOFF+i}, s[{srdW}:{srdW+3}], s{sWoff} offen" for i in range(4)]
        if glb:
            for mt in range(MT):
                L.append(f"buffer_load_dwordx4 {vr(R.AFR+16*st+4*mt,4)}, v{act['voff']}, s[{act['srd']}:{act['srd']+3}], s{act['soff'][mt]} offen {ld_flag}")
            for mt in range(MT):
                L.append(f"s_add_u32 s{act['soff'][mt]}, s{act['soff'][mt]}, {act['step']}")
        L.append(f"s_add_u32 s{sWoff}, s{sWoff}, {16*wrow_bytes}")
        return L
    def perms(st, bf):
        L = []
        for d in range(4):
            for j in range(2):
                L.append(f"v_permlane16_swap_b32 v{R.RAW+16*st+4*d+j}, v{R.RAW+16*st+4*d+2+j}")
        for t in range(4):
            for d in range(4):
                x0 = R.RAW + 16*st + 4*d + t//2
                x1 = R.RAW + 16*st + 4*d + 2 + t//2
                L.append(f"v_perm_b32 v{R.BF+16*bf+4*t+d}, v{x1}, v{x0}, s{sSELA if t%2==0 else sSELB}")
        return L
    def areads(buf, koff):
        return [f"ds_read_b128 {vr(R.AFR+16*buf+4*mt,4)}, v{act['vaddr'][mt]} offset:{koff*act['step']}" for mt in range(MT)]
    def mfmas(j, first):
        ab = (j % 4) if glb else (j % 2)
        L = []
        for t in range(4):
            for mt in range(MT):
                A = vr(R.AFR+16*ab+4*mt,4); B = vr(R.BF+16*(j%2)+4*t,4)
                if swapped: A, B = B, A
                c = acc(mt,t)
                L.append(f"v_mfma_f32_32x32x16_bf16 {vr(c,16)}, {A}, {B}, {'0' if first else vr(c,16)}")
        return L
    for st in range(4 if not glb else 3):
        for x in wloads(st): a(x)
    npro = 4 if not glb else 3
    if not glb:
        for x in areads(0, 0): a(x)
    a(f"s_waitcnt vmcnt({(npro-1)*NL})")
    for x in perms(0, 0): a(x)
    a("s_waitcnt lgkmcnt(0)")
    def kstep(j, first):
        M = mfmas(j, first)
        if glb:
            fill = wloads((j+3) % 4) + [f"s_waitcnt vmcnt({2*NL})"] + perms((j+1) % 4, (j+1) % 2)
        else:
            fill = areads((j+1) % 2, j+1) + wloads(j % 4) + [f"s_waitcnt vmcnt({3*NL})"] + perms((j+1) % 4, (j+1) % 2) + ["s_waitcnt lgkmcnt(0)"]
        per = -(-len(fill) // (len(M) - 1))
        for x in interleave(M, fill, per=per): a(x)
        a("s_nop 0")
    for j in range(4): kstep(j, j == 0)
    if nks > 4:
        a(f"s_mov_b32 s{sCNT}, {nks//4 - 1}")
        lab = a.newlabel("g"+tag)
        a.label(lab)
        if not glb:
            for mt in range(MT): a(f"v_add_u32 v{act['vaddr'][mt]}, {4*act['step']}, v{act['vaddr'][mt]}")
        for j in range(4): kstep(j, False)
        a(f"s_sub_u32 s{sCNT}, s{sCNT}, 1")
        a(f"s_cmp_lg_u32 s{sCNT}, 0")
        a(f"s_cbranch_scc1 {lab}")
    a("s_nop 7"); a("s_nop 7")

def setup_voff(a, R, vl, tmp, wrow_bytes):
    a(f"v_lshrrev_b32 v{tmp}, 5, v{vl}")
    a(f"v_lshlrev_b32 v{tmp}, 3, v{tmp}")
    a(f"v_bfe_u32 v{R.VOFF}, v{vl}, 4, 1")
    a(f"v_add_u32 v{tmp}, v{tmp}, v{R.VOFF}")
    a(f"v_mul_u32_u24 v{tmp}, {wrow_bytes}, v{tmp}")
    a(f"v_and_b32 v{R.VOFF}, 15, v{vl}")
    a(f"v_lshl_add_u32 v{R.VOFF}, v{R.VOFF}, 4, v{tmp}")
    for i in range(1, 4):
        a(f"v_add_u32 v{R.VOFF+i}, {2*i*wrow_bytes}, v{R.VOFF}")

def round_bf16(a, v, tmp=None):
    a(f"v_cvt_pk_bf16_f32 v{v}, v{v}, v{v}")
    a(f"v_lshlrev_b32 v{v}, 16, v{v}")

def row16_sum(a, v):
    for r in (8, 4, 2, 1):
        a("s_nop 1")
        a(f"v_add_f32_dpp v{v}, v{v}, v{v} row_ror:{r} row_mask:0xf bank_mask:0xf")
```

```python
from common import *
from gemm import *
import struct, math
def f2u(x): return struct.unpack('<I', struct.pack('<f', x))[0]

def xsum8(a, v, t):
    a("s_nop 1")
    a(f"v_add_f32_dpp v{v}, v{v}, v{v} row_ror:8 row_mask:0xf bank_mask:0xf")
    for op in ("v_permlane16_swap_b32", "v_permlane32_swap_b32"):
        a(f"v_mov_b32 v{t}, v{v}")
        a("s_nop 1")
        a(f"{op} v{v}, v{t}")
        a(f"v_add_f32 v{v}, v{v}, v{t}")

def ln_f32(a, F, n, T):
    s0, s1, m0, m1, t = T, T+1, T+2, T+3, T+4
    a(f"v_pk_add_f32 v[{s0}:{s1}], v[{F}:{F+1}], v[{F+2}:{F+3}]")
    for i in range(4, n, 2): a(f"v_pk_add_f32 v[{s0}:{s1}], v[{s0}:{s1}], v[{F+i}:{F+i+1}]")
    a(f"v_add_f32 v{s0}, v{s0}, v{s1}")
    xsum8(a, s0, t)
    a(f"v_mul_f32 v{m0}, 0x{f2u(-1.0/512):08x}, v{s0}")
    round_bf16(a, m0)
    a(f"v_mov_b32 v{m1}, v{m0}")
    for i in range(0, n, 2): a(f"v_pk_add_f32 v[{F+i}:{F+i+1}], v[{F+i}:{F+i+1}], v[{m0}:{m1}]")
    a(f"v_pk_mul_f32 v[{s0}:{s1}], v[{F}:{F+1}], v[{F}:{F+1}]")
    for i in range(2, n, 2): a(f"v_pk_fma_f32 v[{s0}:{s1}], v[{F+i}:{F+i+1}], v[{F+i}:{F+i+1}], v[{s0}:{s1}]")
    a(f"v_add_f32 v{s0}, v{s0}, v{s1}")
    xsum8(a, s0, t)
    a(f"v_mul_f32 v{s0}, 0x{f2u(1.0/512):08x}, v{s0}")
    round_bf16(a, s0)
    a(f"v_add_f32 v{s0}, 0x{f2u(1e-5):08x}, v{s0}")
    round_bf16(a, s0)
    a(f"v_sqrt_f32 v{s0}, v{s0}")
    a("s_nop 0")
    round_bf16(a, s0)
    a(f"v_rcp_f32 v{s0}, v{s0}")
    a("s_nop 0")
    a(f"v_mov_b32 v{s1}, v{s0}")
    for i in range(0, n, 2): a(f"v_pk_mul_f32 v[{F+i}:{F+i+1}], v[{F+i}:{F+i+1}], v[{s0}:{s1}]")

def pack(a, P, F, n):
    for i in range(n//2): a(f"v_cvt_pk_bf16_f32 v{P+i}, v{F+2*i}, v{F+2*i+1}")
def unpack(a, F, P, n):
    for i in range(n//2):
        a(f"v_lshlrev_b32 v{F+2*i}, 16, v{P+i}")
        a(f"v_and_b32 v{F+2*i+1}, 0xffff0000, v{P+i}")

LDS_LN2 = 8*1040
def gen_ln2(a):
    sT0, sT1, sP, sROW, sSELA, sSELB = 4,5,6,7,20,21
    SRD_WS, SRD_X = 8, 12
    sKA = 16
    WS = f"s[{SRD_WS}:{SRD_WS+3}]"
    vP, vX, vT0, vT1, vLW, vLR, vHN = 1,2,3,4,5,6,7
    T = 8
    F = 16
    XB = 80
    PB = 112
    a("s_cmp_ge_u32 s2, 256")
    a("s_cbranch_scc1 L_ln2_exit")
    a(f"s_load_dwordx2 s[{sKA}:{sKA+1}], s[0:1], {KA_X}")
    a(f"s_load_dwordx2 s[{sKA+2}:{sKA+3}], s[0:1], {KA_WS}")
    a(f"v_and_b32 v{vT0}, 7, v0")
    a(f"v_lshrrev_b32 v{vT1}, 3, v0")
    a(f"v_lshlrev_b32 v{vP}, 9, v{vT1}")
    a(f"v_lshl_add_u32 v{vP}, v{vT0}, 4, v{vP}")
    a(f"v_lshlrev_b32 v{vX}, 4, v{vT1}")
    a(f"v_lshl_add_u32 v{vX}, v{vT0}, 10, v{vX}")
    a(f"v_mul_u32_u24 v{vLW}, 1040, v{vT0}")
    a(f"v_lshl_add_u32 v{vLW}, v{vT1}, 4, v{vLW}")
    a(f"v_lshlrev_b32 v{vLR}, 2, v0")
    a(f"v_lshrrev_b32 v{vT0}, 4, v0")
    a(f"v_lshlrev_b32 v{vHN}, 17, v{vT0}")
    a(f"v_and_b32 v{vT0}, 15, v0")
    a(f"v_lshl_add_u32 v{vHN}, v{vT0}, 5, v{vHN}")
    a(f"s_mov_b32 s{sSELA}, 0x05040100")
    a(f"s_mov_b32 s{sSELB}, 0x07060302")
    a(f"s_lshr_b32 s{sT0}, s2, 2")
    a(f"s_lshl_b32 s{sP}, s{sT0}, 15")
    a(f"s_and_b32 s{sT1}, s2, 3")
    a(f"s_lshl_b32 s{sT1}, s{sT1}, 7")
    a(f"s_add_u32 s{sP}, s{sP}, s{sT1}")
    a(f"s_add_u32 s{sP}, s{sP}, {WS_P2}")
    a(f"s_lshl_b32 s{sROW}, s2, 13")
    a("s_waitcnt lgkmcnt(0)")
    srd(a, SRD_WS, sKA+2, WS_SIZE)
    srd(a, SRD_X, sKA, 2*MB)
    for c in range(8):
        a(f"buffer_load_dwordx4 {vr(XB+4*c,4)}, v{vX}, s[{SRD_X}:{SRD_X+3}], s{sROW} offen offset:{128*c}")
    def pl(hq):
        for c in range(8):
            a(f"s_add_u32 s{sT0}, s{sP}, {hq*64*8*4096 + c*4096}")
            a(f"buffer_load_dwordx4 {vr(PB+32*(hq%4)+4*c,4)}, v{vP}, {WS}, s{sT0} offen")
    for hq in range(4): pl(hq)
    for hq in range(8):
        a(f"s_waitcnt vmcnt({8*(min(7,hq+3)-hq)})")
        b = PB + 32*(hq%4)
        for i in range(32):
            if hq == 0:
                a(f"v_lshlrev_b32 v{F+2*i}, 16, v{b+i}")
                a(f"v_and_b32 v{F+2*i+1}, 0xffff0000, v{b+i}")
            else:
                a(f"v_lshlrev_b32 v{T}, 16, v{b+i}")
                a(f"v_and_b32 v{T+1}, 0xffff0000, v{b+i}")
                a(f"v_pk_add_f32 v[{F+2*i}:{F+2*i+1}], v[{F+2*i}:{F+2*i+1}], v[{T}:{T+1}]")
        if hq+4 < 8: pl(hq+4)
    pack(a, PB, F, 64); unpack(a, F, PB, 64)
    for i in range(32):
        a(f"v_lshlrev_b32 v{T}, 16, v{XB+i}")
        a(f"v_and_b32 v{T+1}, 0xffff0000, v{XB+i}")
        a(f"v_pk_add_f32 v[{F+2*i}:{F+2*i+1}], v[{F+2*i}:{F+2*i+1}], v[{T}:{T+1}]")
    pack(a, XB, F, 64)
    a(f"s_add_u32 s{sT0}, s{sROW}, {WS_H}")
    for c in range(8):
        a(f"buffer_store_dwordx4 {vr(XB+4*c,4)}, v{vX}, {WS}, s{sT0} offen offset:{128*c}")
    unpack(a, F, XB, 64)
    ln_f32(a, F, 64, T)
    pack(a, PB, F, 64); unpack(a, F, PB, 64)
    ln_f32(a, F, 64, T)
    pack(a, PB, F, 64)
    for c in range(8): a(f"ds_write_b128 v{vLW}, {vr(PB+4*c,4)} offset:{128*c}")
    a("s_waitcnt lgkmcnt(0)")
    for i in range(4):
        for tok in range(8): a(f"ds_read_b32 v{F+8*i+tok}, v{vLR} offset:{tok*1040+256*i}")
    a(f"s_lshl_b32 s{sT0}, s2, 9")
    a(f"s_add_u32 s{sT0}, s{sT0}, {WS_HN}")
    a("s_waitcnt lgkmcnt(0)")
    for i in range(4):
        o = PB + 8*i
        for b in range(2):
            for d in range(4):
                a(f"v_perm_b32 v{o+4*b+d}, v{F+8*i+2*d+1}, v{F+8*i+2*d}, s{sSELA if b==0 else sSELB}")
        for b in range(2):
            a(f"buffer_store_dwordx4 {vr(o+4*b,4)}, v{vHN}, {WS}, s{sT0} offen offset:{16*b}")
        a(f"s_add_u32 s{sT0}, s{sT0}, {4*131072}")
    a("s_waitcnt vmcnt(0)")
    a.label("L_ln2_exit")
    a("s_endpgm")

LDS_G = 65536
def gen_g(a, which):
    g1 = which == 1
    tag = f"g{which}"
    nwg = 224 if g1 else 256
    sW, sDT, sNB, sT0, sT1, sCNT, sWoff, sSELA, sSELB, sA, sC0, sC1 = 4,5,6,7,20,21,22,23,24,25,26,27
    SRD_WS, SRD_W, SRD_B, SRD_O = 8, 12, 16, 28
    sKA = 32
    WS = f"s[{SRD_WS}:{SRD_WS+3}]"
    vL, vT0, vT1, vAO, vLW, vO, vB = 1,2,3,4,5,6,7
    R = GemmRegs(8)
    ACC = 176
    wrow = 3584 if g1 else 4096
    nks = 32 if g1 else 28
    a(f"s_cmp_ge_u32 s2, {nwg}")
    a(f"s_cbranch_scc1 L_{tag}_exit")
    a(f"s_load_dwordx4 s[{sKA}:{sKA+3}], s[0:1], {KA_W1 if g1 else KA_W2}")
    a(f"s_load_dwordx2 s[{sKA+4}:{sKA+5}], s[0:1], {KA_WS}")
    a(f"s_load_dwordx2 s[{sKA+6}:{sKA+7}], s[0:1], {KA_OUT}")
    a(f"v_lshrrev_b32 v{vT0}, 6, v0")
    a(f"v_and_b32 v{vL}, 63, v0")
    a(f"v_readfirstlane_b32 s{sW}, v{vT0}")
    if g1:
        a(f"s_mul_hi_u32 s{sDT}, s2, {-(-(1<<32)//14)}")
        a(f"s_mul_i32 s{sT0}, s{sDT}, 14")
        a(f"s_sub_u32 s{sNB}, s2, s{sT0}")
    else:
        a(f"s_and_b32 s{sNB}, s2, 15")
        a(f"s_lshr_b32 s{sDT}, s2, 4")
    a(f"s_mov_b32 s{sSELA}, 0x05040100")
    a(f"s_mov_b32 s{sSELB}, 0x07060302")
    a("s_waitcnt lgkmcnt(0)")
    srd(a, SRD_WS, sKA+4, WS_SIZE)
    srd(a, SRD_W, sKA, 2048*1792*2)
    srd(a, SRD_B, sKA+2, 3584 if g1 else 4096)
    srd(a, SRD_O, sKA+6, 2*MB)
    setup_voff(a, R, vL, vT0, wrow)
    if g1:
        a(f"v_lshlrev_b32 v{vAO}, 4, v{vL}")
    else:
        a(f"v_and_b32 v{vT0}, 51, v{vL}")
        a(f"v_bfe_u32 v{vT1}, v{vL}, 2, 1")
        a(f"v_lshl_add_u32 v{vT0}, v{vT1}, 3, v{vT0}")
        a(f"v_bfe_u32 v{vT1}, v{vL}, 3, 1")
        a(f"v_lshl_add_u32 v{vT0}, v{vT1}, 2, v{vT0}")
        a(f"v_lshlrev_b32 v{vAO}, 4, v{vT0}")
    a(f"s_mul_i32 s{sWoff}, s{sW}, {nks*16*wrow}")
    a(f"s_lshl_b32 s{sT0}, s{sNB}, 8")
    a(f"s_add_u32 s{sWoff}, s{sWoff}, s{sT0}")
    a(f"s_mul_i32 s{sA}, s{sDT}, {4*nks*1024}")
    a(f"s_mul_i32 s{sT0}, s{sW}, {nks*1024}")
    a(f"s_add_u32 s{sA}, s{sA}, s{sT0}")
    a(f"s_add_u32 s{sA}, s{sA}, {WS_HN if g1 else WS_U}")
    acc = lambda mt, t: ('v', ACC + 16*t)
    gemm_loop(a, R, 1, nks, g1, SRD_W, sWoff, wrow, sSELA, sSELB, dict(kind='glb', voff=vAO, srd=SRD_WS, soff=[sA], step=1024), acc, tag, sCNT)
    a(f"v_lshlrev_b32 v{vT0}, 4, v{vL}")
    a(f"s_lshl_b32 s{sT0}, s{sW}, 14")
    a(f"v_add_u32 v{vLW}, s{sT0}, v{vT0}")
    for p in range(4):
        for j in range(4):
            if g1:
                r = ACC + 16*j + 4*(p//2) + 2*(p%2)
                a(f"ds_write_b64 v{vLW}, {vr(r,2)} offset:{p*4096+j*1024}")
                a(f"ds_write_b64 v{vLW}, {vr(r+8,2)} offset:{p*4096+j*1024+8}")
            else:
                a(f"ds_write_b128 v{vLW}, {vr(ACC + 16*p + 4*j,4)} offset:{p*4096+j*1024}")
    a(f"s_lshl_b32 s{sT0}, s{sW}, 12")
    a(f"v_add_u32 v{vLW}, s{sT0}, v{vT0}")
    E = 16
    a("s_waitcnt vmcnt(0) lgkmcnt(0)")
    a(f"v_lshrrev_b32 v{vT1}, 5, v{vL}")
    a(f"v_and_b32 v{vT0}, 31, v{vL}")
    BB = 96
    if g1:
        a(f"v_lshlrev_b32 v{vB}, 6, v{vT1}")
        a(f"s_lshl_b32 s{sT0}, s{sNB}, 8")
        a(f"s_lshr_b32 s{sT1}, s{sW}, 1")
        a(f"s_lshl_b32 s{sT1}, s{sT1}, 7")
        a(f"s_add_u32 s{sT0}, s{sT0}, s{sT1}")
        a(f"s_and_b32 s{sT1}, s{sW}, 1")
        a(f"s_lshl_b32 s{sT1}, s{sT1}, 5")
        a(f"s_add_u32 s{sT0}, s{sT0}, s{sT1}")
        a(f"buffer_load_dwordx4 {vr(BB,4)}, v{vB}, s[{SRD_B}:{SRD_B+3}], s{sT0} offen")
        a(f"buffer_load_dwordx4 {vr(BB+4,4)}, v{vB}, s[{SRD_B}:{SRD_B+3}], s{sT0} offen offset:16")
        a(f"v_lshlrev_b32 v{vO}, 11, v{vT1}")
        a(f"v_lshl_add_u32 v{vO}, v{vT0}, 4, v{vO}")
    else:
        a(f"v_and_b32 v{vB}, 15, v{vT0}")
        a(f"v_lshrrev_b32 v{vT0}, 4, v{vT0}")
        a(f"v_lshl_add_u32 v{vT0}, v{vB}, 1, v{vT0}")
        a(f"v_lshlrev_b32 v{vB}, 3, v{vT0}")
        a(f"s_lshl_b32 s{sT0}, s{sNB}, 8")
        a(f"s_lshl_b32 s{sT1}, s{sW}, 1")
        a(f"s_add_u32 s{sT0}, s{sT0}, s{sT1}")
        a(f"buffer_load_ushort v{BB+8}, v{vB}, s[{SRD_B}:{SRD_B+3}], s{sT0} offen")
        a(f"v_lshlrev_b32 v{vO}, 12, v{vT0}")
        a(f"v_lshl_add_u32 v{vO}, v{vT1}, 4, v{vO}")
        a(f"s_lshl_b32 s{sC0}, s{sNB}, 17")
        a(f"s_lshl_b32 s{sT1}, s{sW}, 10")
        a(f"s_add_u32 s{sC0}, s{sC0}, s{sT1}")
        a(f"s_lshl_b32 s{sT1}, s{sDT}, 6")
        a(f"s_add_u32 s{sC0}, s{sC0}, s{sT1}")
        a(f"s_add_u32 s{sC1}, s{sC0}, {WS_H}")
        a(f"buffer_load_dwordx4 {vr(BB,4)}, v{vO}, {WS}, s{sC1} offen")
        a(f"buffer_load_dwordx4 {vr(BB+4,4)}, v{vO}, {WS}, s{sC1} offen offset:32")
    a("s_barrier")
    for src in range(4):
        for j in range(4):
            a(f"ds_read_b128 {vr(E+16*src+4*j,4)}, v{vLW} offset:{src*16384+j*1024}")
    a("s_waitcnt lgkmcnt(0)")
    for i in range(0,16,2):
        a(f"v_pk_add_f32 v[{E+i}:{E+i+1}], v[{E+i}:{E+i+1}], v[{E+16+i}:{E+17+i}]")
        a(f"v_pk_add_f32 v[{E+32+i}:{E+33+i}], v[{E+32+i}:{E+33+i}], v[{E+48+i}:{E+49+i}]")
    for i in range(0,16,2):
        a(f"v_pk_add_f32 v[{E+i}:{E+i+1}], v[{E+i}:{E+i+1}], v[{E+32+i}:{E+33+i}]")
    a("s_waitcnt vmcnt(0)")
    G = E + 16
    if g1:
        unpack(a, G, BB, 16)
        c0 = 2*0.7978845608028654*math.log2(math.e); c1 = c0*0.044715
        a(f"s_mov_b32 s{sC0}, 0x{f2u(c0):08x}")
        a(f"v_mov_b32 v{vT0}, 0x{f2u(c1):08x}")
        X = E + 32; Z = E + 48
        for t in range(4):
            for hf in range(2):
                for jj in range(2):
                    fo = 8*jj + 4*hf + t
                    a(f"v_add_f32 v{X+fo}, v{E+4*t+2*hf+jj}, v{G+fo}")
        for i in range(16): a(f"v_mul_f32 v{Z+i}, v{X+i}, v{X+i}")
        for i in range(16): a(f"v_fma_f32 v{Z+i}, v{Z+i}, v{vT0}, s{sC0}")
        for i in range(16): a(f"v_mul_f32_e64 v{Z+i}, -v{X+i}, v{Z+i}")
        for i in range(16): a(f"v_exp_f32 v{Z+i}, v{Z+i}")
        for i in range(16): a(f"v_add_f32 v{Z+i}, 1.0, v{Z+i}")
        for i in range(16): a(f"v_rcp_f32 v{Z+i}, v{Z+i}")
        for i in range(16): a(f"v_mul_f32 v{X+i}, v{X+i}, v{Z+i}")
        pack(a, E, X, 16)
        a(f"s_mul_i32 s{sT0}, s{sDT}, {112*1024}")
        a(f"s_lshl_b32 s{sT1}, s{sNB}, 13")
        a(f"s_add_u32 s{sT0}, s{sT0}, s{sT1}")
        a(f"s_lshr_b32 s{sT1}, s{sW}, 1")
        a(f"s_lshl_b32 s{sT1}, s{sT1}, 12")
        a(f"s_add_u32 s{sT0}, s{sT0}, s{sT1}")
        a(f"s_and_b32 s{sT1}, s{sW}, 1")
        a(f"s_lshl_b32 s{sT1}, s{sT1}, 10")
        a(f"s_add_u32 s{sT0}, s{sT0}, s{sT1}")
        a(f"s_add_u32 s{sT0}, s{sT0}, {WS_U}")
        for u in range(2):
            a(f"buffer_store_dwordx4 {vr(E+4*u,4)}, v{vO}, {WS}, s{sT0} offen offset:{512*u}")
    else:
        pack(a, G, E, 16); unpack(a, E, G, 16)
        a(f"v_lshlrev_b32 v{BB+8}, 16, v{BB+8}")
        for i in range(16): a(f"v_add_f32 v{E+i}, v{E+i}, v{BB+8}")
        pack(a, G, E, 16); unpack(a, E, G, 16)
        unpack(a, G, BB, 16)
        for i in range(16): a(f"v_add_f32 v{E+i}, v{E+i}, v{G+i}")
        pack(a, G+16, E, 16)
        for u in range(2):
            a(f"buffer_store_dwordx4 {vr(G+16+4*u,4)}, v{vO}, s[{SRD_O}:{SRD_O+3}], s{sC0} offen offset:{32*u}")
    a("s_waitcnt vmcnt(0)")
    a.label(f"L_{tag}_exit")
    a("s_endpgm")
```

```python
from common import *
from gemm import *
import recur8 as recur7
from k_qkv import ln_rows, PANEL_BLK, PANEL_MT
import struct, math
def f2u(x): return struct.unpack('<I', struct.pack('<f', x))[0]
LDS_MEGA = 163840
TOUCH = [False]
RKW = {}

def wait_gate(a, srd_dbg, v, sT, sTO, fail):
    lab = a.newlabel("gate")
    a(f"v_mov_b32 v{v+1}, 0")
    a(f"s_mov_b32 s{sTO}, 400000")
    a.label(lab)
    a(f"buffer_load_dword v{v}, v{v+1}, s[{srd_dbg}:{srd_dbg+3}], 0 offen offset:{D_GATE} sc1")
    a("s_waitcnt vmcnt(0)")
    a(f"v_readfirstlane_b32 s{sT}, v{v}")
    a(f"s_sub_u32 s{sTO}, s{sTO}, 1")
    a(f"s_cbranch_scc1 {fail}")
    a(f"s_cmp_lt_u32 s{sT}, 32")
    a(f"s_cbranch_scc1 {lab}")

def prologue(a):
    SD = 8
    a("s_cmp_ge_u32 s2, 256")
    a("s_cbranch_scc1 L_m_exit")
    a(f"s_load_dwordx2 s[4:5], s[0:1], {KA_DBG}")
    a("s_getreg_b32 s6, hwreg(HW_REG_XCC_ID)")
    a("v_lshrrev_b32 v1, 6, v0")
    a("s_and_b32 s6, s6, 7")
    a(f"v_readfirstlane_b32 s{sWAVE}, v1")
    a("v_mov_b32 v4, 0")
    a("s_waitcnt lgkmcnt(0)")
    srd(a, SD, 4, 256)
    DB = f"s[{SD}:{SD+3}]"
    a(f"s_cmp_lg_u32 s{sWAVE}, 0")
    a("s_cbranch_scc1 L_m_bc")
    a("s_mov_b64 exec, 1")
    a("v_mov_b32 v2, 1")
    a("v_mov_b32 v5, 1")
    a("s_lshl_b32 s7, s6, 2")
    a("v_mov_b32 v3, s7")
    a(f"buffer_atomic_add v2, v3, {DB}, 0 offen sc0")
    a("s_waitcnt vmcnt(0)")
    a(f"buffer_atomic_add v5, v4, {DB}, 0 offen offset:{D_TOTAL}")
    a("v_readfirstlane_b32 s7, v2")
    a("s_lshl_b32 s12, s6, 5")
    a("s_add_u32 s12, s12, s7")
    a("s_cmp_lt_u32 s7, 32")
    a("s_cbranch_scc1 L_m_have")
    a("s_mov_b32 s13, 2000000")
    a.label("L_m_ovf")
    a(f"buffer_load_dword v2, v4, {DB}, 0 offen offset:{D_TOTAL} sc1")
    a("s_waitcnt vmcnt(0)")
    a("v_readfirstlane_b32 s7, v2")
    a("s_mov_b32 s12, 0xffff")
    a("s_sub_u32 s13, s13, 1")
    a("s_cbranch_scc1 L_m_have")
    a("s_sleep 8")
    a("s_cmp_lt_u32 s7, 256")
    a("s_cbranch_scc1 L_m_ovf")
    a("v_mov_b32 v2, 1")
    a(f"buffer_atomic_add v2, v4, {DB}, 0 offen offset:{D_OVF} sc0")
    a(f"buffer_load_dwordx4 v[8:11], v4, {DB}, 0 offen sc1")
    a(f"buffer_load_dwordx4 v[12:15], v4, {DB}, 0 offen offset:16 sc1")
    a("s_waitcnt vmcnt(0)")
    a("v_readfirstlane_b32 s7, v2")
    for x in range(8):
        nx = a.newlabel("ov")
        a(f"v_readfirstlane_b32 s13, v{8+x}")
        a("s_min_u32 s13, s13, 32")
        a("s_sub_u32 s14, 32, s13")
        a("s_cmp_lt_u32 s7, s14")
        a(f"s_cbranch_scc0 {nx}")
        a(f"s_add_u32 s12, s13, {32*x}")
        a("s_add_u32 s12, s12, s7")
        a("s_branch L_m_have")
        a.label(nx)
        a("s_sub_u32 s7, s7, s14")
    a.label("L_m_have")
    a("v_mov_b32 v2, s12")
    a("ds_write_b32 v4, v2")
    a("s_waitcnt lgkmcnt(0)")
    a("s_mov_b64 exec, -1")
    a.label("L_m_bc")
    a("s_barrier")
    a("ds_read_b32 v2, v4")
    a("s_waitcnt lgkmcnt(0)")
    a("v_readfirstlane_b32 s2, v2")
    a("s_barrier")
    a("s_cmp_ge_u32 s2, 256")
    a("s_cbranch_scc1 L_m_exit")

def gen_worker_qkv(a):
    sW, sRB, sSLOT, sT0, sT1, sCNT, sWoff, sSELA, sSELB, sONES, sOUT, sHM, sKIND, sRND, sFL, sTO = 4,5,6,7,20,21,22,23,24,25,26,27,28,29,30,31
    SRD_WS, SRD_X, SRD_W, SRD_D = 8, 12, 16, 48
    sKA = 32
    vL, vT0, vT1, vT2, vOK, vOV, vXO = 1, 2, 3, 4, 5, 6, 14
    vWA = 7; vA = 8; vAK, vAV = 12, 13
    vL16, vSR = 15, 20
    R = GemmRegs(16)
    WS = f"s[{SRD_WS}:{SRD_WS+3}]"
    a(f"s_load_dwordx2 s[{sKA}:{sKA+1}], s[0:1], {KA_X}")
    a(f"s_load_dwordx4 s[{sKA+4}:{sKA+7}], s[0:1], {KA_WQ}")
    a(f"s_load_dwordx2 s[{sKA+8}:{sKA+9}], s[0:1], {KA_WV}")
    a(f"s_load_dwordx4 s[{sKA+12}:{sKA+15}], s[0:1], {KA_DBG}")
    a(f"v_and_b32 v{vL}, 63, v0")
    a(f"s_mov_b32 s{sW}, s{sWAVE}")
    a(f"s_mul_hi_u32 s{sSLOT}, s{sROLE}, {-(-(1<<32)//14)}")
    a(f"s_mul_i32 s{sT0}, s{sSLOT}, 14")
    a(f"s_sub_u32 s{sRB}, s{sROLE}, s{sT0}")
    a(f"s_mov_b32 s{sSELA}, 0x05040100")
    a(f"s_mov_b32 s{sSELB}, 0x07060302")
    a(f"s_mov_b32 s{sONES}, 0x3f803f80")
    a(f"s_mov_b32 s{sRND}, 0")
    a(f"s_lshl_b32 s{sHM}, s{sSLOT}, 2")
    a("s_waitcnt lgkmcnt(0)")
    srd(a, SRD_WS, sKA+14, WS_SIZE)
    srd(a, SRD_X, sKA, 2*MB)
    srd(a, SRD_D, sKA+12, 256)
    a(f"v_lshrrev_b32 v{vT0}, 4, v{vL}")
    a(f"v_and_b32 v{vT1}, 15, v{vL}")
    a(f"v_lshlrev_b32 v{vXO}, 4, v{vT1}")
    a(f"v_lshl_add_u32 v{vXO}, v{vT0}, 10, v{vXO}")
    a(f"v_mul_u32_u24 v{vWA}, 528, v{vT1}")
    a(f"v_lshl_add_u32 v{vWA}, v{vT0}, 4, v{vWA}")
    a(f"s_mul_i32 s{sT0}, s{sW}, {PANEL_MT}")
    a(f"v_add_u32 v{vWA}, s{sT0}, v{vWA}")
    setup_voff(a, R, vL, vT0, 8192)
    a(f"v_and_b32 v{vT0}, 3, v{vL}")
    a(f"v_bfe_u32 v{vT1}, v{vL}, 2, 2")
    a(f"v_lshl_add_u32 v{vT0}, v{vT1}, 3, v{vT0}")
    a(f"v_bfe_u32 v{vT1}, v{vL}, 4, 1")
    a(f"v_lshl_add_u32 v{vT0}, v{vT1}, 2, v{vT0}")
    a(f"v_lshrrev_b32 v{vT2}, 5, v{vL}")
    a(f"v_mul_u32_u24 v{vT2}, 528, v{vT2}")
    a(f"v_lshl_add_u32 v{vAK}, v{vT0}, 4, v{vT2}")
    a(f"v_and_b32 v{vT0}, 19, v{vL}")
    a(f"v_bfe_u32 v{vT1}, v{vL}, 2, 1")
    a(f"v_lshl_add_u32 v{vT0}, v{vT1}, 3, v{vT0}")
    a(f"v_bfe_u32 v{vT1}, v{vL}, 3, 1")
    a(f"v_lshl_add_u32 v{vT0}, v{vT1}, 2, v{vT0}")
    a(f"v_lshl_add_u32 v{vAV}, v{vT0}, 4, v{vT2}")
    a(f"v_and_b32 v{vT0}, 15, v{vL}")
    a(f"v_lshlrev_b32 v{vOK}, 4, v{vT0}")
    a(f"v_bfe_u32 v{vT1}, v{vL}, 4, 1")
    a(f"v_lshl_add_u32 v{vOK}, v{vT1}, 12, v{vOK}")
    a(f"v_lshrrev_b32 v{vT1}, 5, v{vL}")
    a(f"v_lshl_add_u32 v{vOK}, v{vT1}, 10, v{vOK}")
    a(f"v_lshlrev_b32 v{vOV}, 8, v{vT1}")
    a(f"v_and_b32 v{vT0}, 3, v{vL}")
    a(f"v_lshl_add_u32 v{vOV}, v{vT0}, 6, v{vOV}")
    a(f"v_bfe_u32 v{vT0}, v{vL}, 2, 2")
    a(f"v_lshl_add_u32 v{vOV}, v{vT0}, 10, v{vOV}")
    a(f"v_bfe_u32 v{vT0}, v{vL}, 4, 1")
    a(f"v_lshl_add_u32 v{vOV}, v{vT0}, 5, v{vOV}")
    a(f"s_lshl_b32 s{sT0}, s{sW}, 12")
    a(f"s_add_u32 s{sT0}, s{sT0}, {4*PANEL_MT}")
    a(f"v_add_u32 v{vOV}, s{sT0}, v{vOV}")
    a(f"v_lshlrev_b32 v{vL16}, 4, v{vL}")
    a(f"v_add_u32 v{vSR}, s{sT0}, v{vL16}")
    trace(a, SRD_WS, None, 0, vT0, vT1, 92)
    a("s_mov_b32 s97, 1")
    a.label("L_w_stage")
    X = 64; F = 192; TT = 224
    a(f"s_lshl_b32 s{sT0}, s{sRB}, 17")
    a(f"s_lshl_b32 s{sT1}, s{sW}, 15")
    a(f"s_add_u32 s{sT0}, s{sT0}, s{sT1}")
    for p in range(8):
        for u in range(4):
            a(f"buffer_load_dwordx4 {vr(X+16*p+4*u,4)}, v{vXO}, s[{SRD_X}:{SRD_X+3}], s{sT0} offen offset:{256*u}")
        a(f"s_add_u32 s{sT0}, s{sT0}, 4096")
    for p in range(8):
        a(f"s_waitcnt vmcnt({(7-p)*4})")
        ln_rows(a, X+16*p, F, TT, sONES)
        for u in range(4):
            a(f"ds_write_b128 v{vWA}, {vr(X+16*p+4*u,4)} offset:{u*8448 + p*64}")
    a("s_waitcnt lgkmcnt(0)")
    a("s_barrier")
    a.label("L_w_tile")
    if TRACE[0]:
        a(f"v_mov_b32 v{vT2}, s97"); trace(a, SRD_WS, None, f"v{vT2}", vT0, vT1, 92); a(f"v_add_u32 v{vT2}, 32, v{vT2}"); trace(a, SRD_WS, None, f"v{vT2}", vT0, vT1, 92, "s_memtime"); a("s_add_u32 s97, s97, 1")
    acc = lambda mt, t: ('a', (mt*4+t)*16)
    E = 224
    a(f"s_add_u32 s{sT0}, s{sHM}, s{sW}")
    a(f"s_lshr_b32 s{sKIND}, s{sT0}, 5")
    a(f"s_and_b32 s{sT0}, s{sT0}, 31")
    a(f"s_lshl_b32 s{sWoff}, s{sT0}, 8")
    a(f"s_lshl_b32 s{sOUT}, s{sT0}, 13")
    a(f"s_lshl_b32 s{sT1}, s{sRB}, 20")
    a(f"s_add_u32 s{sOUT}, s{sOUT}, s{sT1}")
    a(f"s_lshl_b32 s{sFL}, s{sT0}, 6")
    a(f"s_lshl_b32 s{sT1}, s{sRB}, 11")
    a(f"s_add_u32 s{sFL}, s{sFL}, s{sT1}")
    a(f"s_lshl_b32 s{sT1}, s{sKIND}, 4")
    a(f"s_add_u32 s{sFL}, s{sFL}, s{sT1}")
    a(f"s_add_u32 s{sFL}, s{sFL}, {F_QKV}")
    a(f"s_cmp_eq_u32 s{sKIND}, 1")
    a("s_cbranch_scc1 L_w_v")
    a(f"s_cmp_eq_u32 s{sKIND}, 2")
    a("s_cbranch_scc1 L_w_q")
    srd(a, SRD_W, sKA+6, 4*MB)
    a(f"s_add_u32 s{sOUT}, s{sOUT}, {WS_K}")
    a("s_branch L_w_kq")
    a.label("L_w_q")
    srd(a, SRD_W, sKA+4, 4*MB)
    a(f"s_add_u32 s{sOUT}, s{sOUT}, {WS_Q}")
    a.label("L_w_kq")
    for mt in range(4): a(f"v_add_u32 v{vA+mt}, {mt*PANEL_MT}, v{vAK}")
    gemm_loop(a, R, 4, 32, True, SRD_W, sWoff, 8192, sSELA, sSELB, dict(kind='lds', vaddr=[vA+i for i in range(4)], step=PANEL_BLK), acc, "k", sCNT)
    if TRACE[0]:
        a(f"v_mov_b32 v{vT2}, s97"); trace(a, SRD_WS, None, f"v{vT2}", vT0, vT1, 92); a(f"v_add_u32 v{vT2}, 32, v{vT2}"); trace(a, SRD_WS, None, f"v{vT2}", vT0, vT1, 92, "s_memtime"); a("s_add_u32 s97, s97, 1")
    n = 0
    for mt in range(4):
        for q in range(2):
            for j in range(4):
                b = E + (n % 2)*12; n += 1
                for hf in range(2):
                    for t in range(4):
                        a(f"v_accvgpr_read_b32 v{b+4*hf+t}, a{acc(mt,t)[1]+4*q+8*hf+j}")
                for i in range(4):
                    a(f"v_cvt_pk_bf16_f32 v{b+8+i}, v{b+2*i}, v{b+2*i+1}")
                a(f"buffer_store_dwordx4 {vr(b+8,4)}, v{vOK}, {WS}, s{sOUT} offen offset:{q*2048+j*256} sc1")
        a(f"s_add_u32 s{sOUT}, s{sOUT}, {32*8192}")
    a("s_branch L_w_fin")
    a.label("L_w_v")
    srd(a, SRD_W, sKA+8, 4*MB)
    a(f"s_add_u32 s{sOUT}, s{sOUT}, {WS_VT}")
    for mt in range(4): a(f"v_add_u32 v{vA+mt}, {mt*PANEL_MT}, v{vAV}")
    gemm_loop(a, R, 4, 32, False, SRD_W, sWoff, 8192, sSELA, sSELB, dict(kind='lds', vaddr=[vA+i for i in range(4)], step=PANEL_BLK), acc, "v", sCNT)
    if TRACE[0]:
        a(f"v_mov_b32 v{vT2}, s97"); trace(a, SRD_WS, None, f"v{vT2}", vT0, vT1, 92); a(f"v_add_u32 v{vT2}, 32, v{vT2}"); trace(a, SRD_WS, None, f"v{vT2}", vT0, vT1, 92, "s_memtime"); a("s_add_u32 s97, s97, 1")
    n = 0
    RB_ = 192
    for mt in range(4):
        for bb in range(2):
            for t in (bb, bb+2):
                for h2 in range(2):
                    b = E + (n % 2)*12; n += 1
                    for j in range(8): a(f"v_accvgpr_read_b32 v{b+j}, a{acc(mt,t)[1]+8*h2+j}")
                    for j in range(4): a(f"v_cvt_pk_bf16_f32 v{b+8+j}, v{b+2*j}, v{b+2*j+1}")
                    a(f"ds_write_b128 v{vOV}, {vr(b+8,4)} offset:{h2*512+(t//2)*16}")
            rb = RB_ + 16*bb
            for w in range(4): a(f"ds_read_b128 {vr(rb+4*w,4)}, v{vSR} offset:{1024*w}")
            a(f"s_add_u32 s{sT0}, s{sOUT}, 4096")
            a("s_waitcnt lgkmcnt(0)")
            for w in range(4):
                a(f"buffer_store_dwordx4 {vr(rb+4*w,4)}, v{vL16}, {WS}, s{sOUT if w<2 else sT0} offen offset:{(w%2)*2048+bb*1024} sc1")
        a(f"s_add_u32 s{sOUT}, s{sOUT}, {32*8192}")
    a.label("L_w_fin")
    if TRACE[0]:
        a(f"v_mov_b32 v{vT2}, s97"); trace(a, SRD_WS, None, f"v{vT2}", vT0, vT1, 92); a(f"v_add_u32 v{vT2}, 32, v{vT2}"); trace(a, SRD_WS, None, f"v{vT2}", vT0, vT1, 92, "s_memtime"); a("s_add_u32 s97, s97, 1")
    wait_gate(a, SRD_D, vT0, sT0, sTO, "L_m_fail")
    a("s_mov_b64 exec, 1")
    a(f"v_mov_b32 v{vT0}, 1")
    a(f"buffer_store_dword v{vT0}, v{vT1}, {WS}, s{sFL} offen sc1")
    a("s_mov_b64 exec, -1")
    if TOUCH[0]:
        for mt in range(4):
            a(f"s_sub_u32 s{sOUT}, s{sOUT}, {32*8192}")
            a(f"s_add_u32 s{sT0}, s{sOUT}, 4096")
            for i in range(8):
                a(f"buffer_load_dwordx4 v[192:195], v{vL16}, {WS}, s{sOUT if i<4 else sT0} offen offset:{1024*(i%4)} sc1")
        a("s_waitcnt vmcnt(0)")
    if TRACE[0]:
        a(f"v_mov_b32 v{vT2}, s97"); trace(a, SRD_WS, None, f"v{vT2}", vT0, vT1, 92); a(f"v_add_u32 v{vT2}, 32, v{vT2}"); trace(a, SRD_WS, None, f"v{vT2}", vT0, vT1, 92, "s_memtime"); a("s_add_u32 s97, s97, 1")
    a(f"s_cmp_lg_u32 s{sRND}, 0")
    a("s_cbranch_scc1 L_w_after2")
    a(f"s_mov_b32 s{sRND}, 1")
    a(f"s_cmp_ge_u32 s{sSLOT}, 8")
    a("s_cbranch_scc1 L_w_hi")
    a(f"s_add_u32 s{sHM}, s{sHM}, 64")
    a("s_branch L_w_tile")
    a.label("L_w_hi")
    a(f"s_sub_u32 s{sT0}, s{sROLE}, 112")
    a(f"s_cmp_ge_u32 s{sT0}, 48")
    a("s_cbranch_scc1 L_w_toaw")
    a(f"s_and_b32 s{sRB}, s{sT0}, 1")
    a(f"s_add_u32 s{sRB}, s{sRB}, 14")
    a(f"s_lshr_b32 s{sHM}, s{sT0}, 1")
    a(f"s_lshl_b32 s{sHM}, s{sHM}, 2")
    a("s_barrier")
    a("s_branch L_w_stage")

def gen_mega(a, roles=()):
    prologue(a)
    a("s_mov_b32 s98, s2")
    a("s_cmp_lt_u32 s2, 32")
    a("s_cbranch_scc1 L_m_rec")
    a(f"s_sub_u32 s{sROLE}, s2, 32")
    if 'noworkers' in roles: a("s_endpgm")
    gen_worker_qkv(a)
    a.label("L_w_toaw")
    if 'aw' in roles:
        import mega_roles
        mega_roles.gen_aw(a)
    a("s_endpgm")
    a.label("L_w_after2")
    if 'ln2' in roles:
        import mega_roles
        mega_roles.gen_after2(a, roles)
    a.label("L_m_exit")
    a("s_endpgm")
    a.label("L_m_fail")
    a("s_endpgm")
    a.label("L_m_rec")
    recur7.gen_recur(a, **RKW)
```

```python
from common import *
from gemm import *
from k_tail import ln_f32, pack, unpack
import struct, math
def f2u(x): return struct.unpack('<I', struct.pack('<f', x))[0]

def gen_aw(a):
    sW, sHQ, sCH, sSEG, sT0, sT1, sC, sSELA, sSELB, sQ, sK, sV, sM, sOUT, sCNT, sIDX = 4,5,6,7,20,21,22,23,24,25,26,27,28,29,30,31
    sFQ, sFM, sFP, sTO, sNEED = 56, 57, 58, 59, 60
    SRD_WS, SRD_W = 8, 12
    sKA = 16
    sMASK = 32
    WS = f"s[{SRD_WS}:{SRD_WS+3}]"
    vL, vL16, vKM, vOW, vOR, vST, vNEG, vT0, vT1, vT2 = 1,2,3,4,5,6,7,8,9,10
    ONES = 12
    QF, KF, VF, KMF, VMF = 16, 48, 80, 112, 128
    S = 136; PMQ = 160; OA = 168; LA = 184; OP = 192; WACC = 200; AFR = 232
    restore_tid(a)
    a("s_barrier")
    a(f"s_load_dwordx2 s[{sKA}:{sKA+1}], s[0:1], {KA_WO}")
    a(f"s_load_dwordx2 s[{sKA+2}:{sKA+3}], s[0:1], {KA_WS}")
    a(f"v_and_b32 v{vL}, 63, v0")
    a(f"s_mov_b32 s{sW}, s{sWAVE}")
    a(f"s_sub_u32 s{sIDX}, s{sROLE}, 160")
    a(f"s_and_b32 s{sHQ}, s{sIDX}, 7")
    a(f"s_bfe_u32 s{sCH}, s{sIDX}, 0x10003")
    a(f"s_lshr_b32 s{sSEG}, s{sIDX}, 4")
    a(f"s_mov_b32 s{sSELA}, 0x05040100")
    a(f"s_mov_b32 s{sSELB}, 0x07060302")
    a(f"s_mov_b32 s{sC}, 0x{f2u((128 ** -0.5) * math.log2(math.e)):08x}")
    a("s_waitcnt lgkmcnt(0)")
    srd(a, SRD_WS, sKA+2, WS_SIZE)
    srd(a, SRD_W, sKA, 4*MB)
    a(f"v_lshlrev_b32 v{vL16}, 4, v{vL}")
    a(f"s_lshl_b32 s{sT0}, s{sHQ}, 2")
    a(f"s_add_u32 s{sT0}, s{sT0}, s{sW}")
    a(f"s_lshl_b32 s{sFQ}, s{sT0}, 6")
    a(f"s_add_u32 s{sFQ}, s{sFQ}, {F_QKV}")
    a(f"s_lshl_b32 s{sFM}, s{sT0}, 7")
    a(f"s_add_u32 s{sFM}, s{sFM}, {F_M}")
    a(f"s_lshl_b32 s{sFP}, s{sIDX}, 7")
    a(f"s_add_u32 s{sFP}, s{sFP}, {F_P}")
    a(f"s_lshl_b32 s{sT1}, s{sSEG}, 5")
    a(f"s_add_u32 s{sT0}, s{sT0}, s{sT1}")
    a(f"s_lshl_b32 s{sM}, s{sT0}, 12")
    a(f"s_lshl_b32 s{sT0}, s{sT0}, 13")
    a(f"s_add_u32 s{sQ}, s{sT0}, {WS_Q}")
    a(f"s_add_u32 s{sK}, s{sT0}, {WS_K}")
    a(f"s_add_u32 s{sV}, s{sT0}, {WS_VT}")
    a(f"s_add_u32 s{sM}, s{sM}, {WS_KM}")
    a(f"v_bfe_u32 v{vT0}, v{vL}, 2, 2")
    a(f"v_lshlrev_b32 v{vKM}, 8, v{vT0}")
    a(f"v_lshrrev_b32 v{vT1}, 4, v{vL}")
    a(f"v_lshl_add_u32 v{vKM}, v{vT1}, 6, v{vKM}")
    a(f"v_and_b32 v{vT2}, 1, v{vL}")
    a(f"v_lshl_add_u32 v{vKM}, v{vT2}, 2, v{vKM}")
    def x_loads():
        L = []
        for base, sr in ((QF,sQ),(KF,sK),(VF,sV)):
            for i in range(8):
                if i == 4: L.append(f"s_add_u32 s{sT0}, s{sr}, 4096")
                L.append(f"buffer_load_dwordx4 {vr(base+4*i,4)}, v{vL16}, {WS}, s{sr if i<4 else sT0} offen offset:{1024*(i%4)} sc1")
        for s in (sQ, sK, sV): L.append(f"s_add_u32 s{s}, s{s}, {4*32*8192}")
        return L
    def m_loads():
        for ks in range(4):
            for j in range(4):
                a(f"buffer_load_dword v{KMF+4*ks+j}, v{vKM}, {WS}, s{sM} offen offset:{1024*ks+16*j} sc1")
        for w in range(4):
            a(f"buffer_load_dwordx2 {vr(VMF+2*w,2)}, v{vL16}, {WS}, s{sM} offen offset:{1024*w+8} sc1")
        a(f"s_add_u32 s{sM}, s{sM}, {4*32*4096}")
    def wait_qkv():
        a("s_mov_b64 exec, 7")
        poll_flags(a, "awq", f"buffer_load_dword v{vT0}, v{vL16}, {WS}, s{sFQ} offen sc1", 1, vT0, sTO, "L_m_fail", sleep=8)
        a("s_mov_b64 exec, -1")
        a(f"s_add_u32 s{sFQ}, s{sFQ}, 2048")
    vWO = vT2
    a(f"v_lshrrev_b32 v{vT0}, 5, v{vL}")
    a(f"v_lshlrev_b32 v{vT0}, 13, v{vT0}")
    a(f"v_and_b32 v{vT1}, 31, v{vL}")
    a(f"v_lshl_add_u32 v{vWO}, v{vT1}, 2, v{vT0}")
    a(f"v_add_u32 v{vT1}, 4096, v{vWO}")
    a(f"s_lshl_b32 s{sT0}, s{sHQ}, 19")
    a(f"s_lshl_b32 s{sT1}, s{sCH}, 9")
    a(f"s_add_u32 s{sT0}, s{sT0}, s{sT1}")
    a(f"s_lshl_b32 s{sT1}, s{sW}, 7")
    a(f"s_add_u32 s{sOUT}, s{sT0}, s{sT1}")
    RAW = 136; NS = 6
    def wl(ks):
        st = ks % NS
        for i in range(8):
            a(f"buffer_load_dword v{RAW+8*st+i}, v{vWO if i<4 else vT1}, s[{SRD_W}:{SRD_W+3}], s{sOUT} offen offset:{1024*(i%4)}")
        a(f"s_add_u32 s{sOUT}, s{sOUT}, 16384")
    for ks in range(NS): wl(ks)
    for ks in range(32):
        st = ks % NS
        a(f"s_waitcnt vmcnt({8*(min(31,ks+NS-1)-ks)})")
        for t in range(2):
            for d in range(4):
                a(f"v_perm_b32 v{184+4*t+d}, v{RAW+8*st+2*d+1}, v{RAW+8*st+2*d}, s{sSELA if t==0 else sSELB}")
        if ks+NS < 32: wl(ks+NS)
        for j in range(8): a(f"v_accvgpr_write_b32 a{ks*8+j}, v{184+j}")
    a(f"v_and_b32 v{vT0}, 12, v{vL}")
    a(f"v_and_b32 v{vT1}, 15, v{vL}")
    a(f"v_add_u32 v{vT0}, v{vT0}, v{vT1}")
    a(f"v_lshrrev_b32 v{vT1}, 4, v{vL}")
    a(f"v_lshlrev_b32 v{vT2}, 3, v{vT1}")
    a(f"v_sub_u32 v{vT0}, v{vT0}, v{vT2}")
    for z in range(-4, 8):
        a(f"v_cmp_le_i32 s[{sMASK+2*(z+4)}:{sMASK+2*(z+4)+1}], {z}, v{vT0}")
    a(f"v_mov_b32 v{vNEG}, 0xff7fffff")
    for j in range(4): a(f"v_mov_b32 v{ONES+j}, 0x3f803f80")
    a(f"v_lshlrev_b32 v{vOW}, 9, v{vT1}")
    a(f"v_and_b32 v{vT0}, 15, v{vL}")
    a(f"v_lshl_add_u32 v{vOW}, v{vT0}, 4, v{vOW}")
    a(f"s_lshl_b32 s{sT0}, s{sW}, 13")
    a(f"v_add_u32 v{vOW}, s{sT0}, v{vOW}")
    a(f"v_mov_b32 v{vOR}, v{vL16}")
    a(f"v_and_b32 v{vT0}, 3, v{vL}")
    a(f"v_bfe_u32 v{vT1}, v{vL}, 2, 2")
    a(f"v_lshl_add_u32 v{vT0}, v{vT1}, 3, v{vT0}")
    a(f"v_bfe_u32 v{vT1}, v{vL}, 4, 1")
    a(f"v_lshl_add_u32 v{vT0}, v{vT1}, 2, v{vT0}")
    a(f"v_lshrrev_b32 v{vT1}, 5, v{vL}")
    a(f"v_lshlrev_b32 v{vT1}, 9, v{vT1}")
    a(f"v_lshl_add_u32 v{vST}, v{vT0}, 4, v{vT1}")
    a(f"s_lshl_b32 s{sT0}, s{sHQ}, 6")
    a(f"s_add_u32 s{sT0}, s{sT0}, s{sSEG}")
    a(f"s_lshl_b32 s{sT0}, s{sT0}, 3")
    a(f"s_lshl_b32 s{sT1}, s{sCH}, 2")
    a(f"s_add_u32 s{sT0}, s{sT0}, s{sT1}")
    a(f"s_add_u32 s{sT0}, s{sT0}, s{sW}")
    a(f"s_lshl_b32 s{sOUT}, s{sT0}, 12")
    a(f"s_add_u32 s{sOUT}, s{sOUT}, {WS_P2}")
    a(f"s_mov_b32 s{sCNT}, 0")
    a(f"s_add_u32 s{sNEED}, s{sSEG}, 1")
    def mf(d, A, B, c): return f"v_mfma_f32_16x16x32_bf16 {vr(d,4)}, {vr(A,4)}, {vr(B,4)}, {c}"
    def mf16(d, A, B): return f"v_mfma_f32_16x16x16_bf16 {vr(d,4)}, {vr(A,2)}, {vr(B,2)}, {vr(d,4)}"
    a.label("L_aw_loop")
    wait_qkv()
    for x in x_loads(): a(x)
    a("s_waitcnt vmcnt(8)")
    for ks in range(4):
        for Y in range(2):
            for X in range(2):
                d = S + 12*Y + 4*X
                a(mf(d, KF + 16*X + 4*ks, QF+16*Y+4*ks, "0" if ks == 0 else vr(d,4)))
    a("s_mov_b64 exec, 1")
    poll_ge(a, "awm", f"buffer_load_dword v{vT0}, v{vL16}, {WS}, s{sFM} offen sc1", vT0, sNEED, sTO, "L_m_fail", sleep=2)
    a("s_mov_b64 exec, -1")
    m_loads()
    for Y in range(2):
        b = S + 12*Y
        for X in range(2):
            for i in range(4):
                z = 4*X + i - 4*Y
                a(f"v_cndmask_b32 v{b+4*X+i}, v{vNEG}, v{b+4*X+i}, s[{sMASK+2*(z+4)}:{sMASK+2*(z+4)+1}]")
    tm = [vT0, vT1]; tt = [vT2, 11]
    for Y in range(2):
        b = S + 12*Y; m = tm[Y]; t = tt[Y]
        a(f"v_max3_f32 v{m}, v{b}, v{b+1}, v{b+2}")
        a(f"v_max3_f32 v{t}, v{b+3}, v{b+4}, v{b+5}")
        a(f"v_max3_f32 v{m}, v{m}, v{b+6}, v{b+7}")
        a(f"v_max_f32 v{m}, v{m}, v{t}")
    a("s_waitcnt vmcnt(4)")
    for ks in range(4):
        for Y in range(2):
            d = S + 12*Y + 8
            a(mf(d, KMF + 4*ks, QF+16*Y+4*ks, "0" if ks == 0 else vr(d,4)))
    a("s_nop 7")
    for Y in range(2):
        b = S + 12*Y
        a(f"v_max3_f32 v{tm[Y]}, v{tm[Y]}, v{b+8}, v{b+9}")
    for op in ("v_permlane16_swap_b32", "v_permlane32_swap_b32"):
        for Y in range(2): a(f"v_mov_b32 v{tt[Y]}, v{tm[Y]}")
        a("s_nop 1")
        for Y in range(2): a(f"{op} v{tm[Y]}, v{tt[Y]}")
        for Y in range(2): a(f"v_max_f32 v{tm[Y]}, v{tm[Y]}, v{tt[Y]}")
    for Y in range(2): a(f"v_mul_f32 v{tm[Y]}, s{sC}, v{tm[Y]}")
    for Y in range(2):
        b = S + 12*Y
        for i in range(10): a(f"v_fma_f32 v{b+i}, v{b+i}, s{sC}, -v{tm[Y]}")
        for i in range(10): a(f"v_exp_f32 v{b+i}, v{b+i}")
    a("s_nop 0")
    for Y in range(2):
        b = S + 12*Y
        for j in range(4): a(f"v_cvt_pk_bf16_f32 v{b+j}, v{b+2*j}, v{b+2*j+1}")
        p = PMQ + 4*Y
        a(f"v_cvt_pk_bf16_f32 v{p}, v{b+8}, v{b+9}")
        a(f"v_mov_b32 v{p+1}, 0")
        a(f"v_mov_b32 v{p+2}, 0")
        a(f"v_mov_b32 v{p+3}, v{p}")
    a("s_waitcnt vmcnt(0)")
    a("s_nop 0")
    for Y in range(2): a(mf(LA+4*Y, ONES, S+12*Y, "0"))
    for Y in range(2): a(mf16(LA+4*Y, ONES, PMQ+4*Y))
    units = [(Y, w) for Y in range(2) for w in range(4)]
    def pv(n):
        Y, w = units[n]; o = OA + 8*(n%2)
        for b in range(2): a(mf(o+4*b, VF+8*w+4*b, S+12*Y, "0"))
        for b in range(2): a(mf16(o+4*b, VMF+2*w, PMQ+4*Y+2*b))
    def fin(n):
        Y, w = units[n]; o = OA + 8*(n%2); p = OP + 4*(n%2)
        for i in range(8): a(f"v_mul_f32 v{o+i}, v{o+i}, v{LA+4*Y}")
        for i in range(4): a(f"v_cvt_pk_bf16_f32 v{p+i}, v{o+i}, v{o+4+i}")
        a(f"ds_write_b128 v{vOW}, {vr(p,4)} offset:{w*2048+Y*256}")
    pv(0)
    a("s_nop 3")
    for Y in range(2): a(f"v_rcp_f32 v{LA+4*Y}, v{LA+4*Y}")
    for n in range(8):
        if n+1 < 8: pv(n+1)
        else: a("s_nop 7")
        a("s_nop 3")
        fin(n)
    a("s_waitcnt lgkmcnt(0)")
    a("s_barrier")
    for j in range(3): a(f"ds_read_b128 {vr(AFR+4*j,4)}, v{vOR} offset:{1024*j}")
    for ks in range(32):
        if ks+3 < 32: a(f"ds_read_b128 {vr(AFR+4*((ks+3)%4),4)}, v{vOR} offset:{1024*(ks+3)}")
        a(f"s_waitcnt lgkmcnt({min(3, 31-ks)})")
        for t in range(2):
            c = WACC + 16*t
            a(f"v_mfma_f32_32x32x16_bf16 {vr(c,16)}, a[{ks*8+4*t}:{ks*8+4*t+3}], {vr(AFR+4*(ks%4),4)}, {'0' if ks==0 else vr(c,16)}")
    a("s_nop 7"); a("s_nop 3")
    for q in range(4):
        p = OP + 4*(q%2)
        for j in range(4): a(f"v_cvt_pk_bf16_f32 v{p+j}, v{WACC+4*q+j}, v{WACC+16+4*q+j}")
        a(f"buffer_store_dwordx4 {vr(p,4)}, v{vST}, {WS}, s{sOUT} offen offset:{1024*q} sc1")
    a(f"s_add_u32 s{sOUT}, s{sOUT}, {4*8*4096}")
    a(f"s_add_u32 s{sCNT}, s{sCNT}, 1")
    a(f"s_add_u32 s{sNEED}, s{sNEED}, 4")
    a(f"v_mov_b32 v{vT0}, s{sCNT}")
    a("s_waitcnt vmcnt(0)")
    a("s_barrier")
    a(f"s_cmp_lg_u32 s{sW}, 0")
    a("s_cbranch_scc1 L_aw_nf")
    a("s_mov_b64 exec, 1")
    a(f"buffer_store_dword v{vT0}, v{vL16}, {WS}, s{sFP} offen sc1")
    a("s_mov_b64 exec, -1")
    a.label("L_aw_nf")
    a(f"s_cmp_lt_u32 s{sCNT}, 16")
    a("s_cbranch_scc1 L_aw_loop")
    a("s_waitcnt vmcnt(0)")

def gen_ln2(a):
    sT0, sT1, sP, sROW, sSELA, sSELB, sHN, sCNT, sFP, sFH, sNEED, sTO = 4,5,6,7,20,21,22,23,24,25,26,27
    SRD_WS, SRD_X = 8, 12
    sKA = 16
    WS = f"s[{SRD_WS}:{SRD_WS+3}]"
    vP, vX, vT0, vT1, vLW, vLR, vHN, vFL = 1,2,3,4,5,6,7,14
    T = 8; F = 16; XB = 80; PB = 112
    a(f"s_load_dwordx2 s[{sKA}:{sKA+1}], s[0:1], {KA_X}")
    a(f"s_load_dwordx2 s[{sKA+2}:{sKA+3}], s[0:1], {KA_WS}")
    a("v_and_b32 v0, 63, v0")
    a(f"v_and_b32 v{vT0}, 7, v0")
    a(f"v_lshrrev_b32 v{vT1}, 3, v0")
    a(f"v_lshlrev_b32 v{vP}, 9, v{vT1}")
    a(f"v_lshl_add_u32 v{vP}, v{vT0}, 4, v{vP}")
    a(f"v_lshlrev_b32 v{vX}, 4, v{vT1}")
    a(f"v_lshl_add_u32 v{vX}, v{vT0}, 10, v{vX}")
    a(f"v_mul_u32_u24 v{vLW}, 1040, v{vT0}")
    a(f"v_lshl_add_u32 v{vLW}, v{vT1}, 4, v{vLW}")
    a(f"s_mul_i32 s{sT0}, s{sWAVE}, 8320")
    a(f"v_add_u32 v{vLW}, s{sT0}, v{vLW}")
    a(f"v_lshlrev_b32 v{vLR}, 2, v0")
    a(f"v_add_u32 v{vLR}, s{sT0}, v{vLR}")
    a(f"v_lshrrev_b32 v{vT0}, 4, v0")
    a(f"v_lshlrev_b32 v{vHN}, 17, v{vT0}")
    a(f"v_and_b32 v{vT0}, 15, v0")
    a(f"v_lshl_add_u32 v{vHN}, v{vT0}, 5, v{vHN}")
    a(f"v_lshlrev_b32 v{vFL}, 7, v0")
    a(f"s_mov_b32 s{sSELA}, 0x05040100")
    a(f"s_mov_b32 s{sSELB}, 0x07060302")
    a(f"s_lshl_b32 s{sT0}, s{sROLE}, 2")
    a(f"s_add_u32 s{sT0}, s{sT0}, s{sWAVE}")
    a(f"s_lshl_b32 s{sFH}, s{sT0}, 7")
    a(f"s_add_u32 s{sFH}, s{sFH}, {F_H}")
    a(f"s_lshl_b32 s{sROW}, s{sT0}, 13")
    a(f"s_lshl_b32 s{sHN}, s{sT0}, 9")
    a(f"s_add_u32 s{sHN}, s{sHN}, {WS_HN}")
    a(f"s_lshl_b32 s{sP}, s{sROLE}, 15")
    a(f"s_lshl_b32 s{sT1}, s{sWAVE}, 7")
    a(f"s_add_u32 s{sP}, s{sP}, s{sT1}")
    a(f"s_add_u32 s{sP}, s{sP}, {WS_P2}")
    a(f"s_and_b32 s{sT0}, s{sROLE}, 3")
    a(f"s_lshl_b32 s{sFP}, s{sT0}, 11")
    a(f"s_add_u32 s{sFP}, s{sFP}, {F_P}")
    a(f"s_lshr_b32 s{sNEED}, s{sROLE}, 2")
    a(f"s_add_u32 s{sNEED}, s{sNEED}, 1")
    a(f"s_mov_b32 s{sCNT}, 0")
    a("s_waitcnt lgkmcnt(0)")
    srd(a, SRD_WS, sKA+2, WS_SIZE)
    srd(a, SRD_X, sKA, 2*MB)
    a.label("L_ln_loop")
    for c in range(8):
        a(f"buffer_load_dwordx4 {vr(XB+4*c,4)}, v{vX}, s[{SRD_X}:{SRD_X+3}], s{sROW} offen offset:{128*c}")
    a("s_mov_b64 exec, 0xffff")
    poll_ge(a, "lnp", f"buffer_load_dword v{vT0}, v{vFL}, {WS}, s{sFP} offen sc1", vT0, sNEED, sTO, "L_m_fail", sleep=2)
    a("s_mov_b64 exec, -1")
    def pl(hq):
        for c in range(8):
            a(f"s_add_u32 s{sT0}, s{sP}, {hq*64*8*4096 + c*4096}")
            a(f"buffer_load_dwordx4 {vr(PB+32*(hq%4)+4*c,4)}, v{vP}, {WS}, s{sT0} offen sc1")
    for hq in range(4): pl(hq)
    for hq in range(8):
        a(f"s_waitcnt vmcnt({8*(min(7,hq+3)-hq)})")
        b = PB + 32*(hq%4)
        for i in range(32):
            if hq == 0:
                a(f"v_lshlrev_b32 v{F+2*i}, 16, v{b+i}")
                a(f"v_and_b32 v{F+2*i+1}, 0xffff0000, v{b+i}")
            else:
                a(f"v_lshlrev_b32 v{T}, 16, v{b+i}")
                a(f"v_and_b32 v{T+1}, 0xffff0000, v{b+i}")
                a(f"v_pk_add_f32 v[{F+2*i}:{F+2*i+1}], v[{F+2*i}:{F+2*i+1}], v[{T}:{T+1}]")
        if hq+4 < 8: pl(hq+4)
    pack(a, PB, F, 64); unpack(a, F, PB, 64)
    for i in range(32):
        a(f"v_lshlrev_b32 v{T}, 16, v{XB+i}")
        a(f"v_and_b32 v{T+1}, 0xffff0000, v{XB+i}")
        a(f"v_pk_add_f32 v[{F+2*i}:{F+2*i+1}], v[{F+2*i}:{F+2*i+1}], v[{T}:{T+1}]")
    pack(a, XB, F, 64)
    a(f"s_add_u32 s{sT0}, s{sROW}, {WS_H}")
    for c in range(8):
        a(f"buffer_store_dwordx4 {vr(XB+4*c,4)}, v{vX}, {WS}, s{sT0} offen offset:{128*c}")
    unpack(a, F, XB, 64)
    ln_f32(a, F, 64, T)
    pack(a, PB, F, 64); unpack(a, F, PB, 64)
    ln_f32(a, F, 64, T)
    pack(a, PB, F, 64)
    for c in range(8): a(f"ds_write_b128 v{vLW}, {vr(PB+4*c,4)} offset:{128*c}")
    a("s_waitcnt lgkmcnt(0)")
    for i in range(4):
        for tok in range(8): a(f"ds_read_b32 v{F+8*i+tok}, v{vLR} offset:{tok*1040+256*i}")
    a(f"s_mov_b32 s{sT0}, s{sHN}")
    a("s_waitcnt lgkmcnt(0)")
    for i in range(4):
        o = PB + 8*i
        for b in range(2):
            for d in range(4):
                a(f"v_perm_b32 v{o+4*b+d}, v{F+8*i+2*d+1}, v{F+8*i+2*d}, s{sSELA if b==0 else sSELB}")
        for b in range(2):
            a(f"buffer_store_dwordx4 {vr(o+4*b,4)}, v{vHN}, {WS}, s{sT0} offen offset:{16*b} sc1")
        a(f"s_add_u32 s{sT0}, s{sT0}, {4*131072}")
    a(f"s_add_u32 s{sCNT}, s{sCNT}, 1")
    a(f"v_mov_b32 v{vT0}, s{sCNT}")
    a(f"s_add_u32 s{sNEED}, s{sNEED}, 4")
    a(f"s_add_u32 s{sROW}, s{sROW}, {64*8192}")
    a(f"s_add_u32 s{sHN}, s{sHN}, {64*512}")
    a(f"s_add_u32 s{sP}, s{sP}, {16*32768}")
    a("s_waitcnt vmcnt(0)")
    a("s_mov_b64 exec, 1")
    a(f"buffer_store_dword v{vT0}, v{vFL}, {WS}, s{sFH} offen sc1")
    a("s_mov_b64 exec, -1")
    a(f"s_cmp_lt_u32 s{sCNT}, 4")
    a("s_cbranch_scc1 L_ln_loop")
    a("s_waitcnt vmcnt(0)")
    a("s_endpgm")

def gen_g1(a):
    sDT, sNB, sT0, sT1, sSEG, sWoff, sSELA, sSELB, sA, sC0, sFH, sNEED, sTO = 5,6,7,20,21,22,23,24,25,26,27,28,29
    SRD_WS, SRD_W, SRD_B = 8, 12, 16
    sKA = 32
    WS = f"s[{SRD_WS}:{SRD_WS+3}]"
    vL, vT0, vT1, vAO, vFL, vO, vB = 1,2,3,4,5,6,7
    R = GemmRegs(8)
    ACC = 176
    wrow = 3584
    a(f"s_load_dwordx4 s[{sKA}:{sKA+3}], s[0:1], {KA_W1}")
    a(f"s_load_dwordx2 s[{sKA+4}:{sKA+5}], s[0:1], {KA_WS}")
    a(f"v_and_b32 v{vL}, 63, v0")
    a(f"s_sub_u32 s{sT0}, s{sROLE}, 16")
    a(f"s_lshr_b32 s{sNB}, s{sT0}, 2")
    a(f"s_and_b32 s{sDT}, s{sT0}, 3")
    a(f"s_lshl_b32 s{sDT}, s{sDT}, 2")
    a(f"s_add_u32 s{sDT}, s{sDT}, s{sWAVE}")
    a(f"s_mov_b32 s{sSELA}, 0x05040100")
    a(f"s_mov_b32 s{sSELB}, 0x07060302")
    a("s_waitcnt lgkmcnt(0)")
    srd(a, SRD_WS, sKA+4, WS_SIZE)
    srd(a, SRD_W, sKA, 2048*1792*2)
    srd(a, SRD_B, sKA+2, 3584)
    setup_voff(a, R, vL, vT0, wrow)
    a(f"v_lshlrev_b32 v{vAO}, 4, v{vL}")
    a(f"v_lshlrev_b32 v{vFL}, 7, v{vL}")
    a(f"s_lshl_b32 s{sWoff}, s{sNB}, 8")
    a(f"s_lshl_b32 s{sA}, s{sDT}, 17")
    a(f"s_add_u32 s{sA}, s{sA}, {WS_HN}")
    for r in range(ACC, ACC+64, 2): a(f"v_mov_b64 v[{r}:{r+1}], 0")
    a(f"s_mov_b32 s{sSEG}, 0")
    def wloads(st):
        for i in range(4): a(f"buffer_load_dwordx4 {vr(R.RAW+16*st+4*i,4)}, v{R.VOFF+i}, s[{SRD_W}:{SRD_W+3}], s{sWoff} offen")
        a(f"s_add_u32 s{sWoff}, s{sWoff}, {16*wrow}")
    def perms(st, bf):
        for d in range(4):
            for j in range(2): a(f"v_permlane16_swap_b32 v{R.RAW+16*st+4*d+j}, v{R.RAW+16*st+4*d+2+j}")
        for t in range(4):
            for d in range(4):
                a(f"v_perm_b32 v{R.BF+16*bf+4*t+d}, v{R.RAW+16*st+4*d+2+t//2}, v{R.RAW+16*st+4*d+t//2}, s{sSELA if t%2==0 else sSELB}")
    wloads(0); wloads(1)
    a.label("L_g1_loop")
    a(f"s_and_b32 s{sT0}, s{sSEG}, 15")
    a(f"s_lshl_b32 s{sFH}, s{sT0}, 9")
    a(f"s_add_u32 s{sFH}, s{sFH}, {F_H}")
    a(f"s_lshr_b32 s{sNEED}, s{sSEG}, 4")
    a(f"s_add_u32 s{sNEED}, s{sNEED}, 1")
    a("s_waitcnt vmcnt(0)")
    perms(0, 0); perms(1, 1)
    a("s_mov_b64 exec, 15")
    poll_ge(a, "g1p", f"buffer_load_dword v{vT0}, v{vFL}, {WS}, s{sFH} offen sc1", vT0, sNEED, sTO, "L_m_fail", sleep=4)
    a("s_mov_b64 exec, -1")
    a(f"buffer_load_dwordx4 {vr(R.AFR,4)}, v{vAO}, {WS}, s{sA} offen sc1")
    a(f"buffer_load_dwordx4 {vr(R.AFR+4,4)}, v{vAO}, {WS}, s{sA} offen offset:1024 sc1")
    a(f"s_add_u32 s{sA}, s{sA}, 2048")
    wloads(0); wloads(1)
    a("s_waitcnt vmcnt(8)")
    for j in range(2):
        for t in range(4):
            c = ACC + 16*t
            a(f"v_mfma_f32_32x32x16_bf16 {vr(c,16)}, {vr(R.BF+16*j+4*t,4)}, {vr(R.AFR+4*j,4)}, {vr(c,16)}")
    a(f"s_add_u32 s{sSEG}, s{sSEG}, 1")
    a(f"s_cmp_lt_u32 s{sSEG}, 64")
    a("s_cbranch_scc1 L_g1_loop")
    a(f"v_lshrrev_b32 v{vT1}, 5, v{vL}")
    a(f"v_and_b32 v{vT0}, 31, v{vL}")
    a(f"v_lshlrev_b32 v{vB}, 6, v{vT1}")
    a(f"v_lshlrev_b32 v{vO}, 11, v{vT1}")
    a(f"v_lshl_add_u32 v{vO}, v{vT0}, 4, v{vO}")
    BB = 96
    a(f"s_lshl_b32 s{sT0}, s{sNB}, 8")
    a("s_waitcnt vmcnt(0)")
    for q in range(2):
        for j in range(4):
            a(f"buffer_load_dwordx4 {vr(BB+16*q+4*j,4)}, v{vB}, s[{SRD_B}:{SRD_B+3}], s{sT0} offen offset:{128*q+16*j}")
    c0 = 2*0.7978845608028654*math.log2(math.e); c1 = c0*0.044715
    a(f"s_mov_b32 s{sC0}, 0x{f2u(c0):08x}")
    a(f"v_mov_b32 v{vT0}, 0x{f2u(c1):08x}")
    a(f"s_mul_i32 s{sT0}, s{sDT}, {112*1024}")
    a(f"s_lshl_b32 s{sT1}, s{sNB}, 13")
    a(f"s_add_u32 s{sT0}, s{sT0}, s{sT1}")
    a(f"s_add_u32 s{sT0}, s{sT0}, {WS_U}")
    a("s_waitcnt vmcnt(0)")
    G = 16; X = 32; Z = 48; O = 64
    for q in range(2):
        for jp in range(2):
            unpack(a, G, BB+16*q+8*jp, 16)
            for jj in range(2):
                for hf in range(2):
                    for t in range(4):
                        fo = 8*jj + 4*hf + t
                        a(f"v_add_f32 v{X+fo}, v{ACC+16*t+4*q+8*hf+2*jp+jj}, v{G+fo}")
            for i in range(16): a(f"v_mul_f32 v{Z+i}, v{X+i}, v{X+i}")
            for i in range(16): a(f"v_fma_f32 v{Z+i}, v{Z+i}, v{vT0}, s{sC0}")
            for i in range(16): a(f"v_mul_f32_e64 v{Z+i}, -v{X+i}, v{Z+i}")
            for i in range(16): a(f"v_exp_f32 v{Z+i}, v{Z+i}")
            for i in range(16): a(f"v_add_f32 v{Z+i}, 1.0, v{Z+i}")
            for i in range(16): a(f"v_rcp_f32 v{Z+i}, v{Z+i}")
            for i in range(16): a(f"v_mul_f32 v{X+i}, v{X+i}, v{Z+i}")
            o = O + 8*(2*q+jp)
            pack(a, o, X, 16)
            for jj in range(2):
                a(f"buffer_store_dwordx4 {vr(o+4*jj,4)}, v{vO}, {WS}, s{sT0} offen offset:{(2*jp+jj)*512}")
        a(f"s_add_u32 s{sT0}, s{sT0}, 4096")
    a("s_waitcnt vmcnt(0)")
    a("s_endpgm")

def gen_after2(a, roles):
    a(f"s_cmp_ge_u32 s{sROLE}, {72 if 'g1' in roles else 16}")
    a("s_cbranch_scc1 L_m_exit")
    restore_tid(a)
    a("s_barrier")
    if 'g1' in roles:
        a(f"s_cmp_ge_u32 s{sROLE}, 16")
        a("s_cbranch_scc1 L_m_g1")
    gen_ln2(a)
    if 'g1' in roles:
        a.label("L_m_g1")
        gen_g1(a)
```

```python
from common import *
import math, struct


L_W    = 0
L_KX   = 131072
L_MEM  = 147456
L_TQ   = 155648
L_TK   = L_TQ + 2304
L_O    = L_TK + 2304
L_DUM  = L_O + 2304
L_SEL  = L_DUM + 256
LDS_BYTES = L_SEL + 1024
assert LDS_BYTES <= 163840

vIDX, vWL, vMEM0, vMEM1, vMEM2, vMEM3, vKX, vTW, vFQ, vFK, vOW, vOR, vPST, vFST, vM1, vT = range(16)
AF01 = 16
ACC = 24
qA, qB, kA, kB, vA, vB = 24, 28, 32, 36, 40, 44
VXC, VXN = 48, 56
P0, P1, P2, P3 = 64, 80, 96, 112
def AF(i):
    return {0:AF01, 4:AF01+4, 1:P0, 2:P0+4, 3:P0+8, 5:P0+12, 6:P1, 7:P1+4}[i]
OF = [AF01, AF01+4]
SX0, SX1 = P1+8, P1+12
FQ, FK = P2, P3
SM, LA = 24, 28
oA, oB = 32, 36
PM = P2

sW, sH, sSTEP, sPH = 4, 5, 6, 7
SRD_WS, SRD_T, SRD_DBG = 8, 12, 16
sKX, sVX, sKM, sKX2 = 20, 21, 22, 23
sPS = 24
sPL = 26
sFS, sFL, sM0K, sC, sSELA, sSELB, sTO, sT0, sT1, sT2, sSENT, sTHR = 28, 29, 30, 31, 32, 33, 34, 35, 36, 37, 38, 39
sONE = 40
sFL2 = 42
sKA = 44
sFQ, sFM = 58, 59
sEX = 96
sST = 60

GROUPS = [('k',0),('k',1),('v',0),('v',1),('q',1),('o',0),('q',0),('o',1)]
def group_blocks(g):
    x, hf = g
    if x == 'o': return [('o',hf,tp,ks) for tp in range(2) for ks in range(2)]
    return [(x, 4*hf+i) for i in range(4)]
def placement():
    regs = [('a', 16*i) for i in range(16)] + [('v', 128+16*i) for i in range(8)]
    pl = {}
    order = [b for g in GROUPS[:6] for b in group_blocks(g)]
    lds = [b for g in GROUPS[6:] for b in group_blocks(g)]
    for b, r in zip(order, regs): pl[b] = r
    for i, b in enumerate(lds): pl[b] = ('lds', i)
    return pl
PL = placement()
POOLMAP = {('q',0):P0,('q',1):P1,('q',2):P2,('q',3):P3,('o',1,0,0):P0,('o',1,0,1):P3,('o',1,1,0):P2,('o',1,1,1):P1}
QPRE = [('q',0),('q',1),('q',2),('q',3)]
def Breg(b, tile):
    p = PL[b]
    if p[0] == 'lds': return ('v', POOLMAP[b] + 8*tile)
    return (p[0], p[1] + 8*tile)
def smf(acc, af, b, tile):
    return f"v_smfmac_f32_16x16x64_bf16 {vr(acc,4)}, {vr(af,4)}, {vr(Breg(b,tile),8)}, v{vIDX}"
def lds_block_loads(b):
    slot = PL[b][1]; dst = POOLMAP[b]
    return [f"ds_read_b128 {vr(dst+4*j,4)}, v{vWL} offset:{slot*4096+1024*j}" for j in range(4)]
def f2u(x): return struct.unpack('<I', struct.pack('<f', x))[0]
WS = f"s[{SRD_WS}:{SRD_WS+3}]"

def gen_recur(a, stamps=False, pub_flag="sc1", pk=3, fe0=2, fe1=4, fk=4, thr=16.0, modes=("","sc1"), steptr=False, exp=""):
    T = 64
    a(f"s_load_dwordx4 s[{sKA}:{sKA+3}], s[0:1], {KA_WQ}")
    a(f"s_load_dwordx4 s[{sKA+4}:{sKA+7}], s[0:1], {KA_WV}")
    a(f"s_load_dwordx4 s[{sKA+8}:{sKA+11}], s[0:1], {KA_DBG}")
    a(f"s_load_dwordx2 s[{sKA+12}:{sKA+13}], s[0:1], {KA_MEM0}")
    a(f"s_mov_b32 s{sW}, s{sWAVE}")
    a(f"s_mov_b32 s{sH}, s2")
    a("s_waitcnt lgkmcnt(0)")
    srd(a, SRD_WS, sKA+10, WS_SIZE)
    srd(a, SRD_DBG, sKA+8, 256)
    trace(a, SRD_WS, None, 0, 1, 2, 92)
    trace(a, SRD_WS, None, 39, 1, 2, 92, "s_memtime")
    a("v_lshlrev_b32 v1, 4, v0")
    for j in range(4): a(f"v_mov_b32 v{4+j}, 0")
    for j in range(4): a(f"v_mov_b32 v{8+j}, -1")
    a(f"s_lshl_b32 s{sT0}, s{sH}, 12")
    a(f"s_add_u32 s{sT1}, s{sT0}, {WS_FLG}")
    a(f"buffer_store_dwordx4 v[4:7], v1, {WS}, s{sT1} offen sc1")
    a(f"s_lshl_b32 s{sT0}, s{sH}, 13")
    for j in range(2):
        a(f"s_add_u32 s{sT1}, s{sT0}, {WS_PART + 4096*j}")
        a(f"buffer_store_dwordx4 v[4:7], v1, {WS}, s{sT1} offen sc1")
    a(f"s_lshl_b32 s{sT0}, s{sH}, 14")
    for j in range(4):
        a(f"s_add_u32 s{sT1}, s{sT0}, {WS_FRAG + 8192 + 4096*j}")
        a(f"buffer_store_dwordx4 v[8:11], v1, {WS}, s{sT1} offen sc1")
    a("s_waitcnt vmcnt(0)")
    a("s_barrier")
    a(f"s_cmp_lg_u32 s{sW}, 0")
    a("s_cbranch_scc1 L_rec_tk")
    a("s_mov_b64 exec, 1")
    a("v_mov_b32 v2, 1")
    a(f"buffer_atomic_add v2, v4, s[{SRD_DBG}:{SRD_DBG+3}], 0 offen offset:{D_GATE}")
    a("s_mov_b64 exec, -1")
    a.label("L_rec_tk")
    l, n, g, t0, t1, t2, mm, hf = T, T+1, T+2, T+3, T+4, T+5, T+12, T+13
    a(f"v_and_b32 v{l}, 63, v0")
    a(f"v_and_b32 v{n}, 15, v{l}")
    a(f"v_lshrrev_b32 v{g}, 4, v{l}")
    a(f"v_lshrrev_b32 v{t0}, 2, v{n}")
    a(f"v_and_b32 v{t1}, 1, v{n}")
    a(f"v_lshl_add_u32 v{mm}, v{t0}, 1, v{t1}")
    a(f"v_bfe_u32 v{hf}, v{n}, 1, 1")
    a(f"v_mul_u32_u24 v{t0}, 0xAAAA, v{hf}")
    a(f"v_add_u32 v{vIDX}, 0x4444, v{t0}")
    a(f"s_lshl_b32 s{sT0}, s{sW}, 15")
    a(f"v_lshl_add_u32 v{vWL}, v{l}, 4, s{sT0}")
    for q in range(4):
        a(f"s_xor_b32 s{sT0}, s{sW}, {q}")
        a(f"s_lshl_b32 s{sT0}, s{sT0}, 10")
        a(f"s_add_u32 s{sT0}, s{sT0}, {L_MEM}")
        a(f"v_lshl_add_u32 v{vMEM0+q}, v{l}, 4, s{sT0}")
    a(f"s_mov_b32 s{sT0}, {L_KX}")
    a(f"v_lshl_add_u32 v{vKX}, v{l}, 4, s{sT0}")
    a(f"s_lshl_b32 s{sT0}, s{sW}, 6")
    a(f"s_add_u32 s{sT0}, s{sT0}, {L_TQ}")
    a(f"v_mul_u32_u24 v{t0}, 576, v{g}")
    a(f"v_lshl_add_u32 v{t0}, v{n}, 2, v{t0}")
    a(f"v_add_u32 v{vTW}, s{sT0}, v{t0}")
    a(f"v_and_b32 v{t0}, 7, v{n}")
    a(f"v_mul_u32_u24 v{t0}, 288, v{t0}")
    a(f"v_lshl_add_u32 v{t0}, v{g}, 4, v{t0}")
    a(f"v_add_u32 v{vFQ}, {L_TQ}, v{t0}")
    a(f"s_lshl_b32 s{sT0}, s{sW}, 6")
    a(f"s_add_u32 s{sT0}, s{sT0}, {L_O}")
    a(f"v_add_u32 v{vOW}, s{sT0}, v{t0}")
    a(f"v_mul_u32_u24 v{t2}, 288, v{mm}")
    a(f"v_lshl_add_u32 v{t0}, v{g}, 4, v{t2}")
    a(f"v_add_u32 v{vFK}, {L_TK}, v{t0}")
    a(f"v_lshl_add_u32 v{t2}, v{g}, 5, v{t2}")
    a(f"v_lshl_add_u32 v{t2}, v{hf}, 4, v{t2}")
    a(f"v_add_u32 v{vOR}, {L_O}, v{t2}")
    m0off = T+6
    a(f"v_lshlrev_b32 v{m0off}, 10, v{mm}")
    a(f"v_lshl_add_u32 v{m0off}, v{g}, 5, v{m0off}")
    a(f"v_lshl_add_u32 v{m0off}, v{hf}, 4, v{m0off}")
    a(f"v_lshrrev_b32 v{t0}, 2, v{n}")
    a(f"v_lshlrev_b32 v{t0}, 13, v{t0}")
    a(f"v_lshl_add_u32 v{t0}, v{g}, 11, v{t0}")
    a(f"v_and_b32 v{t1}, 3, v{n}")
    a(f"v_lshl_add_u32 v{vPST}, v{t1}, 4, v{t0}")
    a(f"v_lshrrev_b32 v{t0}, 1, v{g}")
    a(f"v_lshlrev_b32 v{t0}, 9, v{t0}")
    a(f"v_and_b32 v{t1}, 1, v{g}")
    a(f"v_lshl_add_u32 v{t0}, v{t1}, 4, v{t0}")
    a(f"v_lshl_add_u32 v{t0}, v{n}, 2, v{t0}")
    a(f"v_mov_b32 v{t1}, 0x40000000")
    a(f"v_cmp_gt_u32 vcc, 4, v{n}")
    a("s_nop 1")
    a(f"v_cndmask_b32 v{vFST}, v{t1}, v{t0}, vcc")
    a(f"v_and_b32 v{t1}, 1, v{n}")
    a(f"v_lshlrev_b32 v{t1}, 4, v{t1}")
    a(f"v_mov_b32 v{t2}, 0x3f80")
    a(f"v_lshlrev_b32 v{t2}, v{t1}, v{t2}")
    a(f"v_bfe_u32 v{t0}, v{n}, 2, 1")
    a(f"v_bfe_u32 v{t1}, v{n}, 3, 1")
    a(f"v_lshl_add_u32 v{t0}, v{t0}, 1, v{t1}")
    for d in range(4):
        a(f"v_cmp_eq_u32 vcc, {d}, v{t0}")
        a("s_nop 1")
        a(f"v_cndmask_b32 v{96+d}, 0, v{t2}, vcc")
    a(f"v_lshlrev_b32 v{t0}, 4, v{l}")
    a(f"v_add_u32 v{t0}, {L_SEL}, v{t0}")
    a(f"ds_write_b128 v{t0}, v[96:99]")
    vDQ, vDO, vRQ, vRO, vRT = T+7, T+8, T+9, T+10, T+11
    a(f"v_lshlrev_b32 v{t1}, 4, v{n}")
    a(f"v_lshl_add_u32 v{vDQ}, v{g}, 13, v{t1}")
    a(f"v_lshrrev_b32 v{t0}, 5, v{l}")
    a(f"v_and_b32 v{t1}, 31, v{l}")
    a(f"v_lshlrev_b32 v{t1}, 4, v{t1}")
    a(f"v_lshl_add_u32 v{vDO}, v{t0}, 10, v{t1}")
    a(f"v_lshrrev_b32 v{t0}, 1, v{g}")
    a(f"v_lshlrev_b32 v{t0}, 4, v{t0}")
    a(f"v_and_b32 v{t1}, 1, v{g}")
    a(f"v_lshl_add_u32 v{t0}, v{t1}, 2, v{t0}")
    a(f"v_lshlrev_b32 v{t1}, 2, v{n}")
    a(f"v_lshl_add_u32 v{vRQ}, v{t0}, 8, v{t1}")
    a(f"s_lshl_b32 s{sT0}, s{sW}, 6")
    a(f"v_add_u32 v{vRQ}, s{sT0}, v{vRQ}")
    a(f"v_lshl_add_u32 v{vRO}, v{t0}, 9, v{t1}")
    a(f"s_lshl_b32 s{sT0}, s{sW}, 7")
    a(f"v_add_u32 v{vRO}, s{sT0}, v{vRO}")
    a(f"s_mov_b32 s{sSELA}, 0x05040100")
    a(f"s_mov_b32 s{sSELB}, 0x07060302")
    a(f"s_mov_b32 s{sSENT}, 0xfffefffe")
    a(f"s_mov_b32 s{sONE}, 0x3f803f80")
    a(f"s_mov_b32 s{sONE+1}, 0x3f803f80")
    a(f"s_mov_b32 s{sTHR}, 0x{f2u(thr):08x}")
    a(f"s_mov_b32 s{sC}, 0x{f2u((128 ** -0.5) * math.log2(math.e)):08x}")
    sWB = 43
    a(f"s_lshl_b32 s{sWB}, s{sW}, 15")
    a(f"s_lshl_b32 s{sT0}, s{sH}, 13")
    a(f"s_sub_u32 s{sT0}, s{sT0}, s{sWB}")
    a(f"s_lshl_b32 s{sT1}, s{sW}, 10")
    a(f"s_add_u32 s{sKX}, s{sT0}, s{sT1}")
    a(f"s_add_u32 s{sKX}, s{sKX}, {WS_K}")
    a(f"s_lshl_b32 s{sT1}, s{sW}, 11")
    a(f"s_add_u32 s{sVX}, s{sT0}, s{sT1}")
    a(f"s_add_u32 s{sVX}, s{sVX}, {WS_VT}")
    a(f"s_add_u32 s{sPL}, s{sT0}, s{sT1}")
    a(f"s_add_u32 s{sPL}, s{sPL}, {WS_PART}")
    a(f"s_lshl_b32 s{sT1}, s{sW}, 10")
    a(f"s_sub_u32 s{sFL}, s{sT1}, s{sWB}")
    a(f"s_add_u32 s{sFL}, s{sFL}, {WS_FRAG}")
    a(f"s_add_u32 s{sFL2}, s{sFL}, 4096")
    a(f"s_lshl_b32 s{sT0}, s{sH}, 12")
    a(f"s_lshl_b32 s{sT1}, s{sW}, 10")
    a(f"s_add_u32 s{sKM}, s{sT0}, s{sT1}")
    a(f"s_sub_u32 s{sKM}, s{sKM}, s{sWB}")
    a(f"s_add_u32 s{sKM}, s{sKM}, {WS_KM - 32*4096}")
    a(f"s_lshl_b32 s{sT0}, s{sH}, 6")
    a(f"s_add_u32 s{sT0}, s{sT0}, s{sWB}")
    for rd in range(2):
        a(f"s_add_u32 s{sPS+rd}, s{sT0}, {WS_PART + rd*16*8192}")
    a(f"s_lshr_b32 s{sT0}, s{sH}, 2")
    a(f"s_lshl_b32 s{sFS}, s{sT0}, 10")
    a(f"s_bfe_u32 s{sT0}, s{sH}, 0x10001")
    a(f"s_lshl_b32 s{sT0}, s{sT0}, 8")
    a(f"s_add_u32 s{sFS}, s{sFS}, s{sT0}")
    a(f"s_and_b32 s{sT0}, s{sH}, 1")
    a(f"s_lshl_b32 s{sT0}, s{sT0}, 5")
    a(f"s_add_u32 s{sFS}, s{sFS}, s{sT0}")
    a(f"s_lshl_b32 s{sT0}, s{sW}, 6")
    a(f"s_add_u32 s{sFS}, s{sFS}, s{sT0}")
    a(f"s_add_u32 s{sFS}, s{sFS}, {WS_FRAG + 8192}")
    a(f"s_lshl_b32 s{sM0K}, s{sW}, 10")
    a(f"s_add_u32 s{sM0K}, s{sM0K}, {L_KX}")
    a(f"s_lshl_b32 s{sT0}, s{sH}, 6")
    a(f"s_sub_u32 s{sT0}, s{sT0}, s{sWB}")
    a(f"s_add_u32 s{sFQ}, s{sT0}, {F_QKV}")
    a(f"s_lshl_b32 s{sT0}, s{sH}, 7")
    a(f"s_add_u32 s{sFM}, s{sT0}, {F_M}")
    a(f"s_cmp_eq_u32 s{sW}, 0")
    a(f"s_cselect_b32 s{sEX}, 1, 0")
    a(f"s_mov_b32 s{sEX+1}, 0")
    a(f"s_mov_b32 s{sSTEP}, 0")
    a(f"s_mov_b32 s{sPH}, 1")
    SW = {'q':64,'k':68,'v':72,'o':76}
    srd(a, 64, sKA+0, 4*MB); srd(a, 68, sKA+2, 4*MB); srd(a, 72, sKA+4, 4*MB); srd(a, 76, sKA+6, 4*MB)
    srd(a, SRD_T, sKA+12, 8192)
    sQB, sOB, sX = 80, 81, 82
    a(f"s_lshl_b32 s{sT0}, s{sH}, 8")
    a(f"s_lshl_b32 s{sT1}, s{sW}, 19")
    a(f"s_add_u32 s{sQB}, s{sT0}, s{sT1}")
    a(f"s_lshl_b32 s{sT0}, s{sH}, 17")
    a(f"s_lshl_b32 s{sT1}, s{sW}, 15")
    a(f"s_add_u32 s{sOB}, s{sT0}, s{sT1}")
    for q in range(4):
        a(f"s_xor_b32 s{sT0}, s{sW}, {q}")
        a(f"s_lshl_b32 s{sX+q}, s{sT0}, 15")
    def issue(gi):
        x, hf = GROUPS[gi]; buf = gi % 2
        for i in range(16):
            a(f"s_add_u32 m0, s{sWB}, {buf*16384 + i*1024}")
            if x == 'o':
                a(f"s_add_u32 s{sT0}, s{sOB}, {2*i*1024 + hf*512}")
                a(f"buffer_load_dwordx4 v{vDO}, s[76:79], s{sT0} offen lds")
            else:
                a(f"s_add_u32 s{sT0}, s{sQB}, {(256*hf+4*i)*8192}")
                a(f"buffer_load_dwordx4 v{vDQ}, s[{SW[x]}:{SW[x]+3}], s{sT0} offen lds")
    a(f"s_lshl_b32 s{sT0}, s{sW}, 7")
    a(f"buffer_load_dwordx4 {vr(AF(0),4)}, v{m0off}, s[{SRD_T}:{SRD_T+3}], s{sT0} offen")
    a(f"buffer_load_dwordx4 {vr(AF(4),4)}, v{m0off}, s[{SRD_T}:{SRD_T+3}], s{sT0} offen offset:512")
    issue(0); issue(1)
    RAWS = [24, 40, 80, 96]
    OUT = 112
    for gi in range(8):
        x, hf = GROUPS[gi]; buf = gi % 2
        a(f"s_waitcnt vmcnt({16 if gi < 7 else 0})")
        a("s_barrier")
        blks = group_blocks(GROUPS[gi])
        for bi, b in enumerate(blks):
            RAW = RAWS[bi]
            if x == 'o':
                _, rd, tp, ks = b
                a(f"v_add_u32 v{vRT}, {ks*65536 + buf*16384 + tp*64}, v{vRO}")
                for d in range(8):
                    ro = 8*(d%2) + 2*((d%4)//2)
                    o0 = 128*(d//4) + 2*ro
                    a(f"ds_read2st64_b32 {vr(RAW+2*d,2)}, v{vRT} offset0:{o0} offset1:{o0+2}")
            else:
                a(f"v_add_u32 v{vRT}, s{sX+bi}, v{vRQ}")
                for d in range(8):
                    o0 = 64*buf + 32*(d//4) + 8*(d%2) + 2*((d%4)//2)
                    a(f"ds_read2st64_b32 {vr(RAW+2*d,2)}, v{vRT} offset0:{o0} offset1:{o0+1}")
            if bi % 2 == 1: a("s_waitcnt lgkmcnt(0)")
        a("s_barrier")
        if gi + 2 < 8: issue(gi+2)
        for bi, b in enumerate(blks):
            RAW = RAWS[bi]; p = PL[b]
            for d in range(8):
                for tile, sel in ((0,sSELA),(1,sSELB)):
                    dst = p[1] + 8*tile + d if p[0] == 'v' else OUT + 8*tile + d
                    a(f"v_perm_b32 v{dst}, v{RAW+2*d+1}, v{RAW+2*d}, s{sel}")
            if p[0] == 'a':
                for j in range(16): a(f"v_accvgpr_write_b32 a{p[1]+j}, v{OUT+j}")
            if p[0] == 'lds':
                assert p[1] == 4*buf + bi
                for j in range(4):
                    a(f"ds_write_b128 v{vWL}, {vr(OUT+4*j,4)} offset:{p[1]*4096+1024*j}")
                a("s_waitcnt lgkmcnt(0)")
    def kv_prefetch(vx_dst):
        return [f"buffer_load_dwordx4 {vr(vx_dst,4)}, v{vWL}, {WS}, s{sVX} offen sc1",
                f"buffer_load_dwordx4 {vr(vx_dst+4,4)}, v{vWL}, {WS}, s{sVX} offen offset:1024 sc1",
                f"s_mov_b32 m0, s{sM0K}",
                f"s_add_u32 s{sKX2}, s{sKX}, 4096",
                f"buffer_load_dwordx4 v{vWL}, {WS}, s{sKX} offen sc1 lds",
                f"s_add_u32 m0, s{sM0K}, 4096",
                f"s_xor_b32 s{sM0K}, s{sM0K}, 8192",
                f"buffer_load_dwordx4 v{vWL}, {WS}, s{sKX2} offen sc1 lds"]
    trace(a, SRD_WS, None, 1, vM1, vT, 92)
    for j in range(8): a(f"v_min_u32 v{AF01+j}, -2, v{AF01+j}")
    a(f"buffer_store_dwordx4 {vr(AF(0),4)}, v{vWL}, {WS}, s{sFL} offen sc1")
    a(f"buffer_store_dwordx4 {vr(AF(4),4)}, v{vWL}, {WS}, s{sFL2} offen sc1")
    a(f"v_mov_b32 v{vT}, 0")
    a(f"s_mov_b32 s{sTO}, 400000")
    a.label("L_rec_gate")
    a(f"buffer_load_dword v{vM1}, v{vT}, s[{SRD_DBG}:{SRD_DBG+3}], 0 offen offset:{D_GATE} sc1")
    a("s_waitcnt vmcnt(0)")
    a(f"v_readfirstlane_b32 s{sT0}, v{vM1}")
    a(f"s_sub_u32 s{sTO}, s{sTO}, 1")
    a("s_cbranch_scc1 L_rec_fail")
    a(f"s_cmp_lt_u32 s{sT0}, 32")
    a("s_cbranch_scc1 L_rec_gate")
    a(f"buffer_load_dword v{vM1}, v{vT}, s[{SRD_DBG}:{SRD_DBG+3}], 0 offen sc1")
    a("s_waitcnt vmcnt(0)")
    a(f"v_readfirstlane_b32 s{sT2}, v{vM1}")
    trace(a, SRD_WS, None, 2, vM1, vT, 92)
    a("s_mov_b64 exec, 3")
    poll_flags(a, "rf0", f"buffer_load_dword v{vM1}, v{vWL}, {WS}, s{sFQ} offen sc1", 1, vM1, sTO, "L_rec_fail", sleep=2)
    a("s_mov_b64 exec, -1")
    trace(a, SRD_WS, None, 3, vM1, vT, 92)
    trace(a, SRD_WS, None, 40, vM1, vT, 92, "s_memtime")
    for x in kv_prefetch(VXC): a(x)
    a(f"s_add_u32 s{sKX}, s{sKX}, {32*8192}")
    a(f"s_add_u32 s{sVX}, s{sVX}, {32*8192}")
    a("s_waitcnt vmcnt(0) lgkmcnt(0)")
    for b in QPRE:
        for x in lds_block_loads(b): a(x)
    for r in range(ACC, ACC+24, 2): a(f"v_mov_b64 v[{r}:{r+1}], 0")
    a("s_waitcnt lgkmcnt(0)")
    a("s_barrier")
    nst = [0]
    def stamp():
        if stamps:
            a(f"s_memtime s[{sST+2*nst[0]}:{sST+2*nst[0]+1}]")
            nst[0] += 1
    def fstamp():
        if stamps == 2: stamp()
    accs = {'q':(qA,qB),'k':(kA,kB),'v':(vA,vB)}
    def M(x, i, t, *fill):
        a(smf(accs[x][t], AF(i), (x,i), t))
        for f in fill: a(f)
    def mf(d, A, B, c): return f"v_mfma_f32_16x16x32_bf16 {vr(d,4)}, {vr(A,4)}, {vr(B,4)}, {c}"
    def mf16(d, A, B): return f"v_mfma_f32_16x16x16_bf16 {vr(d,4)}, {vr(A,2)}, {vr(B,2)}, {vr(d,4)}"
    def D(ins, *fill):
        a(ins)
        for f in fill: a(f)
    def rdAF(i): return f"ds_read_b128 {vr(AF(i),4)}, v{vMEM0+i%4} offset:{4096*(i//4)}"
    def pack_rows(A, B, d0, d1):
        return [f"v_add_f32 v{A}, v{A}, v{A+2}", f"v_add_f32 v{B}, v{B}, v{B+2}",
                f"v_add_f32 v{A+1}, v{A+1}, v{A+3}", f"v_add_f32 v{B+1}, v{B+1}, v{B+3}",
                f"v_cvt_pk_bf16_f32 v{d0}, v{A}, v{B}", f"v_cvt_pk_bf16_f32 v{d1}, v{A+1}, v{B+1}"]
    def rdKX(dst, X, ks): return f"ds_read_b128 {vr(dst,4)}, v{vKX} offset:{4096*X+1024*ks}"
    a(f"ds_write_b128 v{vMEM0}, {vr(AF(0),4)}")
    a(f"s_mov_b32 s{sTO}, 100000")
    if len(modes) > 1:
        a(f"s_cmp_lt_u32 s{sT2}, 32")
        a("s_cbranch_scc1 L_rec1_loop")
    for mi, st_flag in enumerate(modes):
        X = f"L_rec{mi}_"
        nst[0] = 0
        def KA(n):
            for _ in range(n):
                a(f"v_mov_b32 v{vM1}, 0")
                a("s_nop 3")
        FE = f"buffer_load_dwordx4 {vr(AF(0),4)}, v{vWL}, {WS}, s{sFL} offen sc1"
        LP = f"buffer_load_dwordx4 {vr(AF(4),4)}, v{vWL}, {WS}, s{sFL2} offen sc1"
        A4 = AF(4); A0 = AF(0)
        pubr = [f"ds_read_b32 v{SX0}, v{vTW} offset:2304", f"ds_read_b32 v{SX0+1}, v{vTW} offset:{2304+288}", f"ds_read2_b32 v[{SX0+2}:{SX0+3}], v{vTW} offset0:0 offset1:72"]
        pubs = f"buffer_store_dwordx4 {vr(SX0,4)}, v{vWL}, {WS}, s{sKM} offen {pub_flag}"
        a(".p2align 6")
        a.label(X+"loop")
        stamp()
        if stamps: a("s_memrealtime s[98:99]")
        a(LP)
        M('q',0,0); M('q',0,1, "s_waitcnt lgkmcnt(0)", "s_barrier")
        M('k',0,0, rdAF(1), rdAF(2)); M('k',0,1, rdAF(3)); M('v',0,0); M('v',0,1, "s_waitcnt lgkmcnt(2)")
        M('q',1,0, LP); M('q',1,1, "s_waitcnt lgkmcnt(0)"); M('q',2,0); M('q',2,1); M('q',3,0); M('q',3,1)
        M('k',1,0, pubr[0]); M('k',1,1, pubr[1]); M('k',2,0, pubr[2]); M('k',2,1)
        M('k',3,0, "s_waitcnt vmcnt(1)", f"v_max3_u32 v{vM1}, v{A4}, v{A4+1}, v{A4+2}")
        M('k',3,1, f"v_max_u32 v{vM1}, v{vM1}, v{A4+3}")
        M('v',1,0, f"ds_write_b128 v{vMEM0}, {vr(A4,4)} offset:4096", f"v_cmp_eq_u32 vcc, -1, v{vM1}")
        M('v',1,1)
        a("s_cbranch_vccnz "+X+"lspin")
        a.label(X+"lok")
        stamp()
        kvp = kv_prefetch(VXN)
        adv = [f"s_cmp_lt_u32 s{sSTEP}, 62", f"s_cselect_b32 s{sT0}, {32*8192}, 0", f"s_add_u32 s{sKX}, s{sKX}, s{sT0}", f"s_add_u32 s{sVX}, s{sVX}, s{sT0}"]
        warm = [f"s_add_u32 s{sFL}, s{sFL}, 8192", f"s_add_u32 s{sFL2}, s{sFL2}, 8192", f"s_mov_b32 m0, {L_DUM}",
                f"buffer_load_dword v{vWL}, {WS}, s{sFL} offen sc1 lds",
                f"buffer_load_dword v{vWL}, {WS}, s{sFL2} offen sc1 lds"]
        flg = [f"s_add_u32 s{sT1}, s{sSTEP}, 2", f"s_lshr_b32 s{sT1}, s{sT1}, 2", f"s_min_u32 s{sT1}, s{sT1}, 15", f"s_lshl_b32 s{sT1}, s{sT1}, 11",
               f"s_add_u32 s{sT1}, s{sT1}, s{sFQ}", f"s_mov_b32 m0, {L_TK+256}",
               "s_mov_b64 exec, 3", f"buffer_load_dword v{vWL}, {WS}, s{sT1} offen sc1 lds",
               f"s_mov_b64 exec, s[{sEX}:{sEX+1}]", f"buffer_store_dword v{vT}, v{vWL}, {WS}, s{sFM} offen sc1", "s_mov_b64 exec, -1"]
        if 'a' in exp: kvp = [x.replace(" sc1","") for x in kvp]
        if 'b' in exp: pubs = "s_nop 0"; flg[9] = "s_nop 0"
        if 'f' in exp: flg[9] = "s_nop 0"
        if 'g' in exp: pubs = "s_nop 0"
        if 'h' in exp: pubs = pubs.replace(" sc1","")
        if 'i' in exp: pubs = pubs.replace(" sc1"," sc0 sc1")
        if 'j' in exp: pubs = pubs.replace(" sc1"," sc1 nt")
        if 'c' in exp: flg[7] = "s_nop 0"
        if 'd' in exp: warm[3] = "s_nop 0"; warm[4] = "s_nop 0"
        if 'e' in exp: adv[1] = f"s_mov_b32 s{sT0}, 0"
        M('q',4,0, kvp[0], f"s_max_u32 s{sT0}, s{sSTEP}, 1"); M('q',4,1, kvp[1], f"s_sub_u32 s{sT0}, s{sT0}, 1", f"v_mov_b32 v{vT}, s{sT0}"); M('k',4,0, "s_waitcnt lgkmcnt(0)", "s_barrier")
        M('k',4,1, rdAF(5), rdAF(6)); M('v',2,0, rdAF(7), kvp[2]); M('v',2,1, kvp[3], kvp[4]); M('v',3,0, kvp[5], kvp[6], "s_waitcnt lgkmcnt(2)")
        M('q',5,0, kvp[7], pubs); M('q',5,1, warm[0], warm[1], "s_waitcnt lgkmcnt(0)"); M('q',6,0, warm[2], flg[0], flg[1]); M('q',6,1, warm[3], flg[2], flg[3]); M('q',7,0, warm[4], flg[4], flg[5]); M('q',7,1, adv[0], adv[1])
        for x in flg[6:]: a(x)
        stamp()
        M('k',5,0, rdKX(FK,0,0), adv[2]); M('k',5,1, rdKX(FK+4,0,1), adv[3]); M('k',6,0, rdKX(FK+8,0,2), rdKX(FK+12,0,3))
        for x in pack_rows(qA,qB, vM1, vT): a(x)
        a(f"ds_write2_b32 v{vTW}, v{vM1}, v{vT} offset0:0 offset1:72")
        M('k',6,1, rdKX(qA,1,0)); M('k',7,0, rdKX(qB,1,1)); M('k',7,1)
        M('v',3,1, "s_waitcnt lgkmcnt(2)", "s_barrier")
        rdFQ = [f"ds_read_b128 {vr(FQ+4*ks,4)}, v{vFQ} offset:{64*ks}" for ks in range(4)]
        M('v',4,0, rdFQ[0], rdFQ[1])
        for x in pack_rows(kA,kB, vM1, vT): a(x)
        a(rdFQ[2]); a(rdFQ[3])
        M('v',4,1, f"ds_write_b32 v{vTW}, v{vM1} offset:2304", f"ds_write_b32 v{vTW}, v{vT} offset:{2304+288}")
        M('v',5,0, "s_waitcnt lgkmcnt(2)")
        stamp()
        FKR = [kA, kB, FK+8, FK+12]
        rdFK = [f"ds_read_b128 {vr(FKR[ks],4)}, v{vFK} offset:{64*ks}" for ks in range(4)]
        D(mf(SX0, FK, FQ, "0"), rdKX(FK,1,2))
        D(mf(SX0, FK+4, FQ+4, vr(SX0,4)), rdKX(FK+4,1,3))
        D(mf(SX0, FK+8, FQ+8, vr(SX0,4)), "s_waitcnt lgkmcnt(2)", "s_barrier")
        D(mf(SX0, FK+12, FQ+12, vr(SX0,4)), rdFK[0], rdFK[1])
        D(mf(SX1, qA, FQ, "0"), rdFK[2], rdFK[3])
        D(mf(SX1, qB, FQ+4, vr(SX1,4)), "s_waitcnt lgkmcnt(4)")
        D(mf(SX1, FK, FQ+8, vr(SX1,4)), f"v_max3_f32 v{vM1}, v{SX0}, v{SX0+1}, v{SX0+2}")
        D(mf(SX1, FK+4, FQ+12, vr(SX1,4)), "s_waitcnt lgkmcnt(2)")
        D(mf(SM, FKR[0], FQ, "0"))
        D(mf(SM, FKR[1], FQ+4, vr(SM,4)), "s_waitcnt lgkmcnt(0)")
        D(mf(SM, FKR[2], FQ+8, vr(SM,4)), f"v_max3_f32 v{vT}, v{SX0+3}, v{SX1}, v{SX1+1}", f"v_max3_f32 v{vM1}, v{vM1}, v{SX1+2}, v{SX1+3}")
        D(mf(SM, FKR[3], FQ+12, vr(SM,4)), f"v_max_f32 v{vM1}, v{vM1}, v{vT}", f"v_mov_b32 v{vT}, v{vM1}")
        wo11 = lds_block_loads(('o',1,0,1))
        wo10 = lds_block_loads(('o',1,0,0))
        M('v',5,1, wo11[0], f"v_permlane16_swap_b32 v{vM1}, v{vT}")
        a(f"v_max_f32 v{vM1}, v{vM1}, v{vT}")
        a(f"v_mov_b32 v{vT}, v{vM1}")
        M('v',6,0, wo11[1], f"v_permlane32_swap_b32 v{vM1}, v{vT}")
        a(f"v_max_f32 v{vM1}, v{vM1}, v{vT}")
        a(f"v_mul_f32 v{vM1}, s{sC}, v{vM1}")
        xv = [SX0+i for i in range(4)] + [SX1+i for i in range(4)]
        fm = [f"v_fma_f32 v{r}, v{r}, s{sC}, -v{vM1}" for r in xv]
        ex = [f"v_exp_f32 v{r}, v{r}" for r in xv]
        stamp()
        M('v',6,1, wo11[2], fm[0]); a(fm[1]); a(fm[2]); a(fm[3])
        M('v',7,0, wo11[3], fm[4]); a(fm[5]); a(fm[6]); a(fm[7])
        M('v',7,1, wo10[0], ex[0])
        for i in range(1,8): a(ex[i])
        a(f"v_fma_f32 v{SM+2}, v{SM}, s{sC}, -v{vM1}")
        a(f"v_cvt_pk_bf16_f32 v{SX0}, v{SX0}, v{SX0+1}")
        a(f"v_cvt_pk_bf16_f32 v{SX0+1}, v{SX0+2}, v{SX0+3}")
        a(f"v_cvt_pk_bf16_f32 v{SX0+2}, v{SX1}, v{SX1+1}")
        a(f"v_cvt_pk_bf16_f32 v{SX0+3}, v{SX1+2}, v{SX1+3}")
        a(f"v_fma_f32 v{SM+3}, v{SM+1}, s{sC}, -v{vM1}")
        a(f"v_mov_b64 v[{SX1}:{SX1+1}], s[{sONE}:{sONE+1}]")
        D(mf(oA, VXC, SX0, "0"), wo10[1], f"v_max_f32 v{vT}, v{SM+2}, v{SM+3}", f"v_mov_b64 v[{SX1+2}:{SX1+3}], s[{sONE}:{sONE+1}]")
        D(mf(oB, VXC+4, SX0, "0"), wo10[2], f"v_cmp_lt_f32 vcc, s{sTHR}, v{vT}", f"v_add_f32 v{vA}, v{vA}, v{vA+2}")
        D(mf(LA, SX1, SX0, "0"), wo10[3], f"v_add_f32 v{vA+1}, v{vA+1}, v{vA+3}", f"v_add_f32 v{vB}, v{vB}, v{vB+2}")
        a(f"v_add_f32 v{vB+1}, v{vB+1}, v{vB+3}")
        a(f"v_mov_b32 v{PM+1}, 0")
        a(f"v_mov_b32 v{PM+2}, 0")
        a("s_cbranch_vccnz "+X+"slow")
        a.label(X+"back")
        a(f"v_exp_f32 v{SM+2}, v{SM+2}")
        a(f"v_exp_f32 v{SM+3}, v{SM+3}")
        a(f"v_cvt_pk_bf16_f32 v{vA+2}, v{vA}, v{vA+1}")
        a(f"v_cvt_pk_bf16_f32 v{PM}, v{SM+2}, v{SM+3}")
        a(f"v_cvt_pk_bf16_f32 v{vA+3}, v{vB}, v{vB+1}")
        a(f"v_cvt_pk_bf16_f32 v{PM+3}, v{SM+2}, v{SM+3}")
        D(mf16(LA, SX1, PM), f"ds_write2_b32 v{vTW}, v{vA+2}, v{vA+3} offset0:0 offset1:72")
        D(mf16(oA, vA+2, PM), f"s_cmp_eq_u32 s{sSTEP}, 63", f"v_mov_b64 v[48:49], 0")
        D(mf16(oB, vA+2, PM+2), "s_waitcnt vmcnt(%d)"%(9 - 2*('b' in exp) - ('c' in exp) - 2*('d' in exp) - ('f' in exp) - ('g' in exp)), f"v_mov_b64 v[50:51], 0")
        a("s_cbranch_scc1 L_rec_done")
        a(f"v_rcp_f32 v{LA}, v{LA}")
        a(f"v_mov_b64 v[52:53], 0")
        a(f"v_mov_b32 v{LA+1}, v{LA}")
        a(f"v_mov_b64 v[54:55], 0")
        a(f"v_pk_mul_f32 v[{oA}:{oA+1}], v[{oA}:{oA+1}], v[{LA}:{LA+1}]")
        a(f"v_pk_mul_f32 v[{oA+2}:{oA+3}], v[{oA+2}:{oA+3}], v[{LA}:{LA+1}]")
        a(f"v_pk_mul_f32 v[{oB}:{oB+1}], v[{oB}:{oB+1}], v[{LA}:{LA+1}]")
        a(f"v_pk_mul_f32 v[{oB+2}:{oB+3}], v[{oB+2}:{oB+3}], v[{LA}:{LA+1}]")
        for i in range(4):
            a(f"v_cvt_pk_bf16_f32 v{AF01+i}, v{oA+i}, v{oB+i}")
        a(f"ds_write_b128 v{vOW}, {vr(AF01,4)}")
        stamp()
        for r in range(24, 48, 2): a(f"v_mov_b64 v[{r}:{r+1}], 0")
        a("s_waitcnt lgkmcnt(0)")
        a("s_barrier")
        a(f"ds_read_b128 {vr(OF[0],4)}, v{vOR}")
        a(f"ds_read_b128 {vr(OF[1],4)}, v{vOR} offset:128")
        KA(2)
        a("s_waitcnt lgkmcnt(1)")
        stamp()
        def WA(rd, tp, t): return 24 + 16*rd + 8*tp + 4*t
        def W(rd, tp, ks, t, *fill):
            a(smf(WA(rd,tp,t), OF[ks], ('o',rd,tp,ks), t))
            for f in fill: a(f)
        w2 = lds_block_loads(('o',1,1,0)) + lds_block_loads(('o',1,1,1))
        A0_, B0, A1, B1 = WA(0,0,0), WA(0,0,1), WA(0,1,0), WA(0,1,1)
        W(0,0,0,0); W(0,0,0,1, "s_waitcnt lgkmcnt(0)"); W(0,0,1,0, w2[0]); W(0,0,1,1, w2[1])
        W(0,1,0,0, w2[2]); W(0,1,0,1, w2[3])
        W(0,1,1,0, w2[4], f"v_add_f32 v{A0_}, v{A0_}, v{A0_+2}")
        W(0,1,1,1, w2[5], f"v_add_f32 v{A0_+1}, v{A0_+1}, v{A0_+3}")
        W(1,0,0,0, w2[6], f"v_add_f32 v{A0_+2}, v{B0}, v{B0+2}")
        a(f"v_add_f32 v{A0_+3}, v{B0+1}, v{B0+3}")
        a(f"v_cvt_pk_bf16_f32 v{B0}, v{A0_}, v{A0_+2}")
        W(1,0,0,1, w2[7], f"v_cvt_pk_bf16_f32 v{B0+2}, v{A0_+1}, v{A0_+3}")
        a(f"v_add_f32 v{A1}, v{A1}, v{A1+2}")
        a(f"v_add_f32 v{A1+1}, v{A1+1}, v{A1+3}")
        a(f"v_add_f32 v{B1}, v{B1}, v{B1+2}")
        a(f"v_add_f32 v{B1+1}, v{B1+1}, v{B1+3}")
        a(f"v_bfi_b32 v{B0}, 1, s{sPH}, v{B0}")
        a(f"v_cvt_pk_bf16_f32 v{B0+1}, v{A1}, v{B1}")
        a(f"v_cvt_pk_bf16_f32 v{B0+3}, v{A1+1}, v{B1+1}")
        a(f"buffer_store_dwordx4 {vr(B0,4)}, v{vPST}, {WS}, s{sPS} offen {st_flag}")
        C0, E0, C1, E1 = WA(1,0,0), WA(1,0,1), WA(1,1,0), WA(1,1,1)
        G = A0_
        W(1,0,1,0); W(1,0,1,1, "s_waitcnt lgkmcnt(0)")
        W(1,1,0,0, f"s_cmp_lt_u32 s{sH}, 16", f"v_subrev_u32 v{vT}, s{sWB}, v{vWL}")
        W(1,1,0,1, f"v_add_f32 v{C0}, v{C0}, v{C0+2}")
        W(1,1,1,0, f"v_add_f32 v{E0}, v{E0}, v{E0+2}")
        W(1,1,1,1, f"v_add_f32 v{C0+1}, v{C0+1}, v{C0+3}")
        a(f"v_add_f32 v{E0+1}, v{E0+1}, v{E0+3}")
        a(f"v_cvt_pk_bf16_f32 v{G}, v{C0}, v{E0}")
        a(f"v_cvt_pk_bf16_f32 v{G+2}, v{C0+1}, v{E0+1}")
        a(f"v_bfi_b32 v{G}, 1, s{sPH}, v{G}")
        a(f"v_add_f32 v{C1}, v{C1}, v{C1+2}")
        a(f"v_add_f32 v{C1+1}, v{C1+1}, v{C1+3}")
        a(f"v_add_u32 v{vT}, {L_SEL}, v{vT}")
        a(f"v_add_f32 v{E1}, v{E1}, v{E1+2}")
        a(f"v_add_f32 v{E1+1}, v{E1+1}, v{E1+3}")
        a(f"v_cvt_pk_bf16_f32 v{G+1}, v{C1}, v{E1}")
        a(f"v_cvt_pk_bf16_f32 v{G+3}, v{C1+1}, v{E1+1}")
        a(f"buffer_store_dwordx4 {vr(G,4)}, v{vPST}, {WS}, s{sPS+1} offen {st_flag}")
        stamp()
        SEL = 40; RA = 32; RB = 24; RD = 44
        hk = []
        for b in QPRE: hk += lds_block_loads(b)
        mv = [f"v_mov_b64 v[{VXC+j}:{VXC+j+1}], v[{VXN+j}:{VXN+j+1}]" for j in range(0,8,2)]
        def ppl(R):
            a(f"buffer_load_dwordx4 {vr(R,4)}, v{vWL}, {WS}, s{sPL} offen sc1")
            a(f"buffer_load_dwordx4 {vr(R+4,4)}, v{vWL}, {WS}, s{sPL} offen offset:1024 sc1")
        def hk1(nyoung):
            a(f"ds_read_b128 {vr(SEL,4)}, v{vT}")
            a(f"s_waitcnt vmcnt({nyoung})")
            for i in range(4):
                a(hk[2*i]); a(hk[2*i+1]); a(mv[i])
        def hk2():
            for i in range(4):
                a(hk[8+2*i]); a(hk[9+2*i]); a(f"v_mov_b32 v{vM1}, 0")
            a(f"v_xor_b32 v{vKX}, 8192, v{vKX}")
            a(f"ds_read_b64 v[{RD}:{RD+1}], v{vFQ} offset:{2304+256}")
            a("s_waitcnt lgkmcnt(0)")
            a(f"v_min_u32 v{RD}, v{RD}, v{RD+1}")
            a("s_nop 0")
            a(f"v_readfirstlane_b32 s{sT2}, v{RD}")
        a("s_cbranch_scc1 "+X+"early")
        hk1(2); ppl(RA); hk2(); ppl(RB); KA(pk)
        a("s_branch "+X+"pp")
        a.label(X+"early")
        ppl(RA); hk1(4); ppl(RB); hk2()
        def ppc(R):
            a(f"v_mov_b32 v{vM1}, 0")
            a("s_waitcnt vmcnt(2) lgkmcnt(0)")
            a(f"v_bitop3_b32 v{vT}, v{R}, v{R+4}, s{sPH} bitop3:0x7e")
            a(f"v_and_b32 v{vT}, 1, v{vT}")
            a(f"v_cmp_eq_u32 vcc, 1, v{vT}")
            a(mf(RD, SEL, R, "0"))
            a(mf(RD, SEL, R+4, vr(RD,4)))
            a(f"s_cbranch_vccz "+X+"ppd")
        a.label(X+"pp")
        ppc(RA); ppl(RA); KA(pk); ppc(RB); ppl(RB); KA(pk)
        a(f"s_sub_u32 s{sTO}, s{sTO}, 1")
        a(f"s_cbranch_scc0 "+X+"pp")
        a(f"s_branch L_rec_fail")
        a.label(X+"ppd")
        stamp()
        a(f"s_cmp_lt_u32 s{sH}, 16")
        a("s_cbranch_scc1 "+X+"nofe")
        a(FE)
        a.label(X+"nofe")
        a(f"s_add_u32 s{sSTEP}, s{sSTEP}, 1")
        a(f"s_xor_b32 s{sPH}, s{sPH}, 1")
        a(f"s_add_u32 s{sKM}, s{sKM}, {32*4096}")
        a(f"s_cmp_lt_u32 s{sH}, 16")
        a("s_nop 0")
        a(f"v_add_f32_dpp v{RD}, v{RD}, v{RD} row_ror:8 row_mask:0xf bank_mask:0xf")
        a(f"v_add_f32_dpp v{RD+1}, v{RD+1}, v{RD+1} row_ror:8 row_mask:0xf bank_mask:0xf")
        a("s_nop 0")
        a(f"v_add_f32_dpp v{RD}, v{RD}, v{RD} row_ror:4 row_mask:0xf bank_mask:0xf")
        a(f"v_add_f32_dpp v{RD+1}, v{RD+1}, v{RD+1} row_ror:4 row_mask:0xf bank_mask:0xf")
        a(f"v_cvt_pk_bf16_f32 v{vT}, v{RD}, v{RD+1}")
        a(f"v_min_u32 v{vT}, -2, v{vT}")
        a(f"buffer_store_dword v{vT}, v{vFST}, {WS}, s{sFS} offen {st_flag}")
        stamp()
        if steptr:
            a("s_memrealtime s[92:93]")
            a(f"s_sub_u32 s94, s{sSTEP}, 8")
            a(f"s_min_u32 s94, s94, 47")
            a(f"s_mul_hi_u32 s95, s94, {-(-(1<<32)//12)}")
            a("s_lshl_b32 s95, s95, 2")
            a("s_add_u32 s94, s94, s95")
            a("s_add_u32 s94, s94, 4")
            a("s_waitcnt lgkmcnt(0)")
            a("s_or_b32 s92, s92, 0x40000000")
            a("s_and_b32 s92, s92, 0x7fffffff")
            a("s_mov_b32 m0, s94")
            a("s_nop 0")
            a(f"v_writelane_b32 v{vFST}, s92, m0")
            a(f"s_cmp_lt_u32 s{sH}, 16")
        if TRACE[0]:
            a(f"s_and_b32 s97, s{sSTEP}, 7")
            a("s_cbranch_scc1 "+X+"notr")
            a(f"s_lshr_b32 s97, s{sSTEP}, 3"); a("s_add_u32 s97, s97, 4"); a(f"v_mov_b32 v{RD+2}, s97")
            trace(a, SRD_WS, None, f"v{RD+2}", vM1, RD+3, 92)
            a("s_waitcnt vmcnt(0)")
            a(FE)
            a.label(X+"notr")
            a(f"s_cmp_lt_u32 s{sH}, 16")
        for r in range(40,48,2): a(f"v_mov_b64 v[{r}:{r+1}], 0")
        a("s_cbranch_scc0 "+X+"fel")
        KA(fe0)
        a(FE)
        KA(fe1)
        a.label(X+"fel")
        a(FE)
        a(f"s_cmp_eq_u32 s{sT2}, 0" if 'c' not in exp else "s_cmp_eq_u32 0, 1")
        a("s_cbranch_scc1 "+X+"kvwait")
        a.label(X+"kvok")
        a(f"s_add_u32 s{sFS}, s{sFS}, 8192")
        a("s_waitcnt vmcnt(3)")
        for r in range(24,40,2): a(f"v_mov_b64 v[{r}:{r+1}], 0")
        KA(1)
        a.label(X+"fp")
        a(f"v_mov_b32 v{vM1}, 0")
        a("s_waitcnt vmcnt(1)")
        a(f"v_max3_u32 v{vM1}, v{A0}, v{A0+1}, v{A0+2}")
        a(f"v_max_u32 v{vM1}, v{vM1}, v{A0+3}")
        a(f"v_cmp_eq_u32 vcc, -1, v{vM1}")
        a(f"ds_write_b128 v{vMEM0}, {vr(A0,4)}")
        a(f"s_sub_u32 s{sTO}, s{sTO}, 1")
        a(f"s_cbranch_scc1 L_rec_fail")
        a("s_cbranch_vccz "+X+('dump' if stamps else 'loop'))
        a(FE)
        KA(fk)
        a(f"s_branch "+X+"fp")
        if stamps:
            a.label(X+"dump")
            stamp()
            a(f"s_cmp_lg_u32 s{sSTEP}, 40")
            a("s_cbranch_scc1 "+X+"loop")
            a("s_waitcnt lgkmcnt(0)")
            a(f"s_lshl_b32 s{sT0}, s{sH}, 2")
            a(f"s_add_u32 s{sT0}, s{sT0}, s{sW}")
            a(f"s_lshl_b32 s{sT0}, s{sT0}, 7")
            a(f"s_add_u32 s{sT0}, s{sT0}, {WS_XN}")
            a(f"v_mov_b32 v{vM1}, 0")
            for i in range(nst[0]):
                a(f"v_mov_b32 v{vT}, s{sST+2*i}")
                a(f"buffer_store_dword v{vT}, v{vM1}, {WS}, s{sT0} offen offset:{4*i}")
                a("s_nop 1")
            a(f"v_mov_b32 v{vT}, s{sTO}")
            a(f"buffer_store_dword v{vT}, v{vM1}, {WS}, s{sT0} offen offset:124")
            a("s_nop 1")
            a(f"v_mov_b32 v{vT}, s98")
            a(f"buffer_store_dword v{vT}, v{vM1}, {WS}, s{sT0} offen offset:120")
            a("s_waitcnt vmcnt(0)")
            a("s_branch "+X+"loop")
        a.label(X+"lspin")
        a(LP)
        KA(3)
        a(f"v_mov_b32 v{vM1}, 0")
        a("s_waitcnt vmcnt(1)")
        a(f"v_max3_u32 v{vM1}, v{A4}, v{A4+1}, v{A4+2}")
        a(f"v_max_u32 v{vM1}, v{vM1}, v{A4+3}")
        a(f"v_cmp_eq_u32 vcc, -1, v{vM1}")
        a(f"ds_write_b128 v{vMEM0}, {vr(A4,4)} offset:4096")
        a(f"s_sub_u32 s{sTO}, s{sTO}, 1")
        a(f"s_cbranch_scc1 L_rec_fail")
        a(f"s_cbranch_vccz "+X+"lok")
        a("s_branch "+X+"lspin")
        a.label(X+"slow")
        a(f"v_max_f32 v{vT}, 0, v{vT}")
        a(f"v_mov_b32 v{SM}, v{vT}")
        a("s_nop 1")
        a(f"v_permlane16_swap_b32 v{vT}, v{SM}")
        a(f"v_max_f32 v{vT}, v{vT}, v{SM}")
        a(f"v_mov_b32 v{SM}, v{vT}")
        a("s_nop 1")
        a(f"v_permlane32_swap_b32 v{vT}, v{SM}")
        a(f"v_max_f32 v{vT}, v{vT}, v{SM}")
        a(f"v_sub_f32 v{SM+2}, v{SM+2}, v{vT}")
        a(f"v_sub_f32 v{SM+3}, v{SM+3}, v{vT}")
        a(f"v_sub_f32 v{vT}, 0, v{vT}")
        a(f"v_exp_f32 v{vT}, v{vT}")
        a("s_nop 7")
        for r in list(range(oA,oA+4))+list(range(oB,oB+4))+list(range(LA,LA+4)):
            a(f"v_mul_f32 v{r}, v{r}, v{vT}")
        a("s_branch "+X+"back")
        a.label(X+"kvwait")
        a("s_mov_b64 exec, 3")
        poll_flags(a, "rkv", f"buffer_load_dword v{vM1}, v{vWL}, {WS}, s{sT1} offen sc1", 1, vM1, sT0, "L_rec_fail", sleep=2)
        a("s_mov_b64 exec, -1")
        a(FE)
        a("s_branch "+X+"kvok")

    a.label("L_rec_fail")
    a("s_mov_b64 exec, -1")
    a(f"v_mov_b32 v{vM1}, 0")
    a(f"v_mov_b32 v{vT}, 0xdead")
    a(f"buffer_store_dword v{vT}, v{vM1}, s[{SRD_DBG}:{SRD_DBG+3}], 0 offen offset:64")
    a("s_endpgm")
    a.label("L_rec_done")
    if steptr:
        a(f"s_lshl_b32 s{sT0}, s{sH}, 2")
        a(f"s_add_u32 s{sT0}, s{sT0}, s{sW}")
        a(f"s_lshl_b32 s{sT0}, s{sT0}, 10")
        a(f"s_sub_u32 s{sT0}, s{sT0}, s{sWB}")
        a(f"s_add_u32 s{sT0}, s{sT0}, {WS_XN}")
        a(f"buffer_store_dword v{vFST}, v{vWL}, {WS}, s{sT0} offen")
    a("s_waitcnt lgkmcnt(0)")
    a(f"ds_read_b32 v{SX0}, v{vTW} offset:2304")
    a(f"ds_read_b32 v{SX0+1}, v{vTW} offset:{2304+288}")
    a(f"ds_read2_b32 v[{SX0+2}:{SX0+3}], v{vTW} offset0:0 offset1:72")
    a(f"s_add_u32 s{sKM}, s{sKM}, {32*4096}")
    a("s_waitcnt lgkmcnt(0)")
    a(f"buffer_store_dwordx4 {vr(SX0,4)}, v{vWL}, {WS}, s{sKM} offen {pub_flag}")
    a("s_waitcnt vmcnt(0)")
    trace(a, SRD_WS, None, 36, vM1, vT, 92)
    trace(a, SRD_WS, None, 41, vM1, vT, 92, "s_memtime")
    a("s_barrier")
    a(f"v_mov_b32 v{vT}, 64")
    a(f"s_mov_b64 exec, s[{sEX}:{sEX+1}]")
    a(f"buffer_store_dword v{vT}, v{vWL}, {WS}, s{sFM} offen sc1")
    a("s_waitcnt vmcnt(0)")
    a("s_endpgm")
```

```python
import sys
from common import *
import k_qkv, recur4, k_aw, k_tail, mega
HDR = open('sequential_preLN__memory_aug_recurrent_mem_tr__mixer_token_mlp__prompt.s.ref').read().split("; Override launch")[0]
def build(kernels, path):
    txt = HDR
    for k in kernels: txt += f"; @launch kernel={k[0]} grid=({k[2]},1,1) block=({k[3]},1,1) lds={k[4]}\n"
    txt += '.amdgcn_target "amdgcn-amd-amdhsa--gfx950"\n.text\n'
    for k in kernels:
        a = Asm(); a.uid = 1000*kernels.index(k); k[1](a)
        txt += kernel_header(k[0]) + a.text()
    txt += '.section .rodata,"a"\n'
    for k in kernels: txt += kernel_desc(k[0], k[5], 102, k[6])
    open(path,'w').write(txt)
KS = {
 'qkv': ("qkv_kernel", k_qkv.gen_qkv, 256, 256, k_qkv.LDS_QKV, 512, 256),
 'recur': ("recur_kernel", recur4.gen_recur, 256, 256, recur4.LDS_BYTES, 512, 256),
 'aw': ("aw_kernel", k_aw.gen_aw, 256, 256, k_aw.LDS_AW, 512, 256),
 'ln2': ("ln2_kernel", k_tail.gen_ln2, 256, 64, k_tail.LDS_LN2, 256, 256),
 'g1': ("g1_kernel", lambda a: k_tail.gen_g(a,1), 224, 256, k_tail.LDS_G, 256, 256),
 'g2': ("g2_kernel", lambda a: k_tail.gen_g(a,2), 256, 256, k_tail.LDS_G, 256, 256),
 'mega0': ("mega_kernel", lambda a: mega.gen_mega(a), 256, 256, mega.LDS_MEGA, 512, 256),
 'megaN': ("mega_kernel", lambda a: mega.gen_mega(a, ('noworkers',)), 256, 256, mega.LDS_MEGA, 512, 256),
 'mega1': ("mega_kernel", lambda a: mega.gen_mega(a, ('aw',)), 256, 256, mega.LDS_MEGA, 512, 256),
 'mega2': ("mega_kernel", lambda a: mega.gen_mega(a, ('aw','ln2')), 256, 256, mega.LDS_MEGA, 512, 256),
 'mega3': ("mega_kernel", lambda a: mega.gen_mega(a, ('aw','ln2','g1')), 256, 256, mega.LDS_MEGA, 512, 256),
}
if __name__ == "__main__":
    if 'trace' in sys.argv: TRACE[0] = True; sys.argv.remove('trace')
    build([KS[n] for n in sys.argv[2:]], sys.argv[1])
```
